```python
import torch

def _softmax(x, axis=-1):
    return torch.softmax(x, dim=axis)
def _gelu(x):
    return torch.nn.functional.gelu(x, approximate="tanh")
def _silu(x):
    return torch.nn.functional.silu(x)
def _sigmoid(x):
    return torch.sigmoid(x)
def _layernorm(x, axis=-1, eps=1e-5):
    m = x.mean(dim=axis, keepdim=True)
    v = x.var(dim=axis, keepdim=True, unbiased=False)
    return (x - m) / torch.sqrt(v + eps)
def _scatter_add(tgt, idx, src, axis=0):
    return tgt.clone().index_add_(axis, idx, src)
def _segment_sum(src, seg, n):
    out = torch.zeros((n,) + src.shape[1:], dtype=src.dtype)
    return out.index_add_(0, seg, src)
def _pad(x, pw):
    flat = tuple(v for pair in reversed(pw) for v in pair)
    return torch.nn.functional.pad(x, flat)

kernel_name = 'parallel_sum__sliding_local_dilated__mixer_channel_mlp__prompt'

def setup_inputs():

    _w = (lambda a: (lambda t: t.to(torch.bfloat16) if t.is_floating_point() else t)(torch.as_tensor(a)))
    def _A_setup():
        B, S, D = 1, 2048, 448
        return {
            "x": _w((lambda *s: torch.randn(*s, dtype=torch.bfloat16) * 0.05)(B, S, D)),
            "wqkv": _w((lambda *s: torch.randn(*s, dtype=torch.bfloat16) * 0.05)(D, 3 * D)),
            "wo": _w((lambda *s: torch.randn(*s, dtype=torch.bfloat16) * 0.05)(D, D)),
        }
    _A_in = _A_setup()

    def _B_setup():
        B, S, D, F = 1, 2048, 448, 1792
        return {
            "x": _w((lambda *s: torch.randn(*s, dtype=torch.bfloat16) * 0.05)(B, S, D)),
            "w1": _w((lambda *s: torch.randn(*s, dtype=torch.bfloat16) * 3.2)(D, F) * (D ** -0.5)),
            "b1": _w((lambda *s: torch.randn(*s, dtype=torch.bfloat16) * 1.6)(F)),
            "w2": _w((lambda *s: torch.randn(*s, dtype=torch.bfloat16) * 0.2)(F, D) * (F ** -0.5)),
            "b2": _w((lambda *s: torch.randn(*s, dtype=torch.bfloat16) * 0.2)(D)),
        }
    _B_in = _B_setup()

    return {
        "A_x": _A_in["x"],
        "A_wqkv": _A_in["wqkv"],
        "A_wo": _A_in["wo"],
        "B_x": _B_in["x"],
        "B_w1": _B_in["w1"],
        "B_b1": _B_in["b1"],
        "B_w2": _B_in["w2"],
        "B_b2": _B_in["b2"],
    }

def reference(A_x, A_wqkv, A_wo, B_x, B_w1, B_b1, B_w2, B_b2):
    def _A_ref(x, wqkv, wo):
        B, S, D = x.shape
        H = 16; Dh = D // H
        W, dil = 8, 2
        qkv = (lambda x, *d: x.permute(*d))((x @ wqkv).reshape(B, S, 3, H, Dh), 2, 0, 3, 1, 4)
        q, k, v = qkv[0], qkv[1], qkv[2]
        scale = Dh ** -0.5
        pos = torch.arange(S)
        off = torch.arange(W) * dil
        idx = pos[:, None] - off[None, :]
        mask = idx >= 0
        idx_c = torch.where(mask, idx, 0).reshape(-1)
        kg = k[:, :, idx_c, :].reshape(B, H, S, W, Dh)
        vg = v[:, :, idx_c, :].reshape(B, H, S, W, Dh)
        logits = torch.einsum("bhsd,bhswd->bhsw", q, kg) * scale
        logits = torch.where(mask[None, None, :, :], logits, -1e9)
        attn = _softmax(logits, axis=-1)
        o = torch.einsum("bhsw,bhswd->bhsd", attn, vg)
        return (lambda x, *d: x.permute(*d))(o, 0, 2, 1, 3).reshape(B, S, D) @ wo

    def _B_ref(x, w1, b1, w2, b2):
        y = _layernorm(x, axis=-1)
        h = _gelu(torch.einsum("bsd,df->bsf", y, w1) + b1)
        return torch.einsum("bsf,fd->bsd", h, w2) + b2

    x = A_x
    xn = _layernorm(x, axis=-1)
    return x + _A_ref(xn, A_wqkv, A_wo) + _B_ref(xn, B_w1, B_b1, B_w2, B_b2)
```

```python
import re

REG = re.compile(r'^(-|\|)?([vas])(\d+)\|?$')
RNG = re.compile(r'^(-|\|)?([vas])\[(\d+):(\d+)\]\|?$')
TRANS = ('v_exp_f32', 'v_log_f32', 'v_rcp_f32', 'v_rsq_f32', 'v_sqrt_f32', 'v_sin_f32', 'v_cos_f32')

def regs_of(tok):
    tok = tok.strip()
    m = REG.match(tok)
    if m: return [m.group(2) + m.group(3)]
    m = RNG.match(tok)
    if m: return [m.group(2) + str(i) for i in range(int(m.group(3)), int(m.group(4)) + 1)]
    if tok == 'vcc': return ['vcc']
    if tok in ('vcc_lo', 'vcc_hi'): return ['vcc']
    if tok == 'm0': return ['m0']
    if tok in ('exec', 'exec_lo', 'exec_hi'): return ['exec']
    return []

class Ins:
    __slots__ = ('text', 'op', 'kind', 'defs', 'uses', 'srcc', 'passes', 'tag', 'cond', 'wait', 'cost', 'data', 'note')
    def __init__(self, text, tag=None, cond=False, note=None):
        self.text = text.strip(); self.tag = tag; self.cond = cond; self.wait = None; self.note = note
        self.defs = []; self.uses = []; self.srcc = []; self.passes = 0; self.data = []
        t = self.text.split(';')[0].strip()
        if t.endswith(':') or t.startswith('.') or t == '':
            self.op = ''; self.kind = 'label' if t.endswith(':') else 'dir'; self.cost = 0; return
        sp = t.split(None, 1)
        op = self.op = sp[0]
        rest = sp[1] if len(sp) > 1 else ''
        ops = []; cur = ''; d = 0
        for ch in rest:
            if ch == '[': d += 1
            if ch == ']': d -= 1
            if ch == ',' and d == 0: ops.append(cur.strip()); cur = ''
            else: cur += ch
        if cur.strip(): ops.append(cur.strip())
        mods = ''
        if ops:
            l = ops[-1].split(None, 1)
            ops[-1] = l[0]
            if len(l) > 1: mods = l[1]
        R = [regs_of(o) for o in ops]
        flat = lambda x: [r for y in x for r in y]
        self.cost = 4
        if op.startswith('v_mfma'):
            self.kind = 'mfma'; self.defs = R[0]; self.uses = flat(R[1:]); self.srcc = R[3]
            self.passes = 8 if '32x32x16' in op else 4
            self.cost = 8
        elif op.startswith('v_'):
            base = op.replace('_e32', '').replace('_e64', '')
            self.kind = 'trans' if base in TRANS else 'valu'
            if self.kind == 'trans': self.cost = 8
            if 'permlane' in op and 'swap' in op:
                self.defs = flat(R); self.uses = flat(R); self.kind = 'perm'
            elif op == 'v_nop': pass
            else:
                self.defs = list(R[0]); self.uses = flat(R[1:])
                if op.startswith(('v_fmac', 'v_dot2c', 'v_mac', 'v_writelane')): self.uses += R[0]
                if op.startswith('v_dot'): self.kind = 'dot'
                if 'dpp' in op or 'row_' in mods or 'quad_perm' in mods:
                    self.kind = 'dpp'; self.uses += R[0]
                if op.startswith('v_cmpx'): self.defs += ['exec']
                if op.startswith(('v_add_co', 'v_sub_co', 'v_addc_co')): self.defs += R[1]
        elif op.startswith('ds_'):
            self.kind = 'ds'
            if op.startswith('ds_read'): self.defs = R[0]; self.uses = flat(R[1:])
            elif op.startswith(('ds_bpermute', 'ds_permute', 'ds_swizzle')): self.defs = R[0]; self.uses = flat(R[1:])
            else:
                self.uses = flat(R); self.data = flat(R[1:])
                if 'b128' in op: self.cost = 12
        elif op.startswith('buffer_'):
            self.kind = 'vmem'
            if op.startswith('buffer_load'):
                if re.search(r'\blds\b', mods): self.uses = flat(R) + ['m0']; self.kind = 'dma'
                else: self.defs = R[0]; self.uses = flat(R[1:])
            else:
                self.uses = flat(R); self.data = R[0]
                if op.startswith('buffer_atomic') and re.search(r'\bsc0\b', mods): self.defs = R[0]
        elif op.startswith('s_'):
            self.kind = 'salu'
            if op.startswith(('s_load', 's_memrealtime', 's_memtime')):
                self.kind = 'smem'; self.defs = R[0]; self.uses = flat(R[1:])
            elif op.startswith(('s_cmp', 's_bitcmp')): self.uses = flat(R); self.defs = ['scc']
            elif op.startswith(('s_cbranch', 's_branch', 's_endpgm')): self.kind = 'branch'
            elif op.startswith(('s_waitcnt', 's_barrier', 's_setprio', 's_sleep')): self.kind = 'ctl'
            elif op == 's_nop': self.kind = 'nop'
            elif 'saveexec' in op: self.defs = R[0] + ['exec']; self.uses = flat(R[1:]) + ['exec']
            else:
                self.defs = list(R[0]); self.uses = flat(R[1:])
        else:
            raise ValueError('unknown op ' + t)
    def is_valu(self): return self.kind in ('valu', 'trans', 'perm', 'dot', 'dpp')

def I(txt, **kw):
    return [Ins(l, **kw) for l in txt.strip('\n').split('\n') if l.strip()]

class Group:
    def __init__(self, items):
        self.items = list(items); self.cost = sum(x.cost for x in self.items); self.passes = 0
def G(txt, **kw): return [Group(I(txt, **kw))]
def flatten(prog):
    out = []
    for x in prog:
        if isinstance(x, Group): out += flatten(x.items)
        else: out.append(x)
    return out

class Wait(Ins):
    def __init__(self, vm=(), lgkm0=False, vm0=False, lg=()):
        Ins.__init__(self, 's_waitcnt PSEUDO')
        self.wait = (set(vm), lgkm0, vm0, set(lg))

def resolve_waits(prog):
    out = []
    vmq = []
    lgq = []
    smem = []
    def emit(vm, lg):
        parts = []
        if vm is not None:
            vm = min(vm, 63); parts.append(f'vmcnt({vm})')
            keep = []; n = 0
            for x in reversed(vmq):
                if not x.cond:
                    if n >= vm: break
                    n += 1
                keep.append(x)
            vmq[:] = list(reversed(keep))
        if lg is not None:
            lg = min(lg, 15); parts.append(f'lgkmcnt({lg})')
            if lg == 0: smem.clear()
            lgq[:] = lgq[len(lgq) - lg:] if lg else []
        if parts:
            out.append(Ins('s_waitcnt ' + ' '.join(parts)))
    def younger(q, idx):
        return sum(1 for x in q[idx + 1:] if not x.cond)
    for ins in prog:
        if ins.wait is not None:
            tags, l0, v0, lgt = ins.wait
            vm = None; lg = None
            if v0: vm = 0
            else:
                idx = max((i for i, x in enumerate(vmq) if x.tag in tags), default=None)
                if idx is not None: vm = younger(vmq, idx)
            if l0: lg = 0
            else:
                idx = max((i for i, x in enumerate(lgq) if x.tag in lgt), default=None)
                if idx is not None: lg = len(lgq) - 1 - idx
            emit(vm, lg)
            continue
        if ins.op == 's_waitcnt':
            m = re.search(r'vmcnt\((\d+)\)', ins.text); m2 = re.search(r'lgkmcnt\((\d+)\)', ins.text)
            emit(int(m.group(1)) if m else None, int(m2.group(1)) if m2 else None)
            continue
        touched = set(ins.defs) | set(ins.uses)
        vm = None; lg = None
        if touched:
            idx = max((i for i, x in enumerate(vmq) if touched & set(x.defs)), default=None)
            if idx is not None:
                vm = younger(vmq, idx)
            idx = max((i for i, x in enumerate(lgq) if touched & set(x.defs)), default=None)
            if idx is not None:
                lg = len(lgq) - 1 - idx
                if smem: lg = 0
            if any(touched & set(x.defs) for x in smem): lg = 0
            if vm is not None or lg is not None:
                emit(vm, lg); out[-1].note = 'auto'
        out.append(ins)
        if ins.kind in ('vmem', 'dma'): vmq.append(ins)
        elif ins.kind == 'ds': lgq.append(ins)
        elif ins.kind == 'smem': smem.append(ins)
    return out

def nstates(ins):
    if ins.kind in ('label', 'dir'): return 0
    if ins.kind == 'nop': return int(ins.text.split()[1]) + 1
    return 1

def need(p, c):
    n = 0
    pd = set(p.defs); cu = set(c.uses); cd = set(c.defs)
    if p.kind == 'mfma':
        ps = p.passes
        if c.kind == 'mfma':
            ab = set(c.uses) - set(c.srcc) | (set(c.uses[:8]) & set(c.srcc))
            if pd & set(c.uses[:8]): n = max(n, ps + 4)
            if pd & set(c.srcc):
                if not (p.defs == c.srcc and p.passes == c.passes): n = max(n, ps + 2)
            elif pd & cd: n = max(n, ps + 4)
        elif c.is_valu() or c.kind in ('vmem', 'dma', 'ds'):
            if pd & (cu | cd): n = max(n, ps + 4)
            if c.is_valu() and set(p.srcc) & cd: n = max(n, ps - 1)
            if c.kind in ('ds', 'vmem') and set(p.srcc) & cd: n = max(n, ps - 1)
    elif p.is_valu():
        vd = {r for r in pd if r[0] in 'va' and r != 'vcc'}
        sd = pd - vd
        if c.kind == 'mfma':
            if vd & cu: n = max(n, 3 if p.kind == 'dot' else 2)
            if 'exec' in sd: n = max(n, 4)
        if c.kind in ('perm', 'dpp') and vd & cu: n = max(n, 2)
        if c.kind == 'perm' and 'exec' in sd: n = max(n, 4)
        if c.kind == 'dpp' and 'exec' in sd: n = max(n, 5)
        if c.op.startswith(('v_readfirstlane', 'v_readlane')):
            if vd & cu: n = max(n, 1)
            if sd & cu or 'exec' in sd: n = max(n, 4)
        if p.kind == 'trans' and (c.is_valu() or c.kind in ('ds', 'vmem')) and vd & cu: n = max(n, 1)
        if p.kind == 'dot':
            if vd & (cu | cd) and (c.is_valu() or c.kind in ('ds', 'vmem', 'mfma')):
                same = (c.op == p.op)
                if same:
                    ab = c.uses[:2] if not c.op.startswith('v_dot2c') else c.uses[:2]
                    if vd & set(ab): n = max(n, 3)
                else: n = max(n, 3)
        if c.is_valu() and (sd - {'exec'}) & cu: n = max(n, 2)
        if c.kind in ('vmem', 'dma') and sd & cu: n = max(n, 5)
        if c.kind == 'salu' and sd & cu: n = max(n, 1)
    elif p.kind == 'salu':
        if 'm0' in pd and c.kind == 'dma': n = max(n, 1)
    elif p.kind in ('vmem', 'ds'):
        if p.data and len(p.data) >= 3 and set(p.data) & cd: n = max(n, 2)
    return n

def pad_hazards(prog):
    out = []
    hist = []
    npad = 0
    for ins in prog:
        if ins.kind in ('label', 'dir'):
            out.append(ins); continue
        req = 0
        dist = 0
        for p in reversed(hist):
            r = need(p, ins) - dist
            if r > req: req = r
            dist += nstates(p)
            if dist > 20: break
        while req > 0:
            k = min(req, 8)
            nop = Ins(f's_nop {k-1}'); nop.note = 'hz'
            out.append(nop); hist.append(nop); req -= k; npad += k
        out.append(ins); hist.append(ins)
        if len(hist) > 64: hist = hist[-32:]
    return out, npad

def render(prog):
    return '\n'.join(i.text for i in prog) + '\n'

def interleave(*streams):
    streams = [s for s in streams if s]
    tot = [sum(x.cost for x in s) for s in streams]
    pos = [0] * len(streams); acc = [0.0] * len(streams)
    out = []
    while True:
        best = None
        for k, s in enumerate(streams):
            if pos[k] < len(s):
                f = acc[k] / tot[k] if tot[k] else 0
                if best is None or f < best[0]: best = (f, k)
        if best is None: return out
        k = best[1]; x = streams[k][pos[k]]; pos[k] += 1; acc[k] += x.cost; out.append(x)

def split_cost(ops, caps):
    tot = sum(o.cost for o in ops); ct = sum(caps)
    out = [[] for _ in caps]
    if not ops: return out
    acc = 0; k = 0; lim = caps[0] * tot / ct
    for o in ops:
        while k < len(caps) - 1 and acc + o.cost / 2 > lim:
            k += 1; lim += caps[k] * tot / ct
        out[k].append(o); acc += o.cost
    return out
```

```python
import sys, struct
from asmlib import *

KN = "parallel_sum__sliding_local_dilated__mixer_channel_mlp__prompt_kernel"
def f2u(x): return struct.unpack('<I', struct.pack('<f', x))[0]
GA = -2.0 * 1.4426950408889634 * 0.7978845608028654
GB = GA * 0.044715
SCL = (28 ** -0.5) * 1.4426950408889634
NEG = 0xF149F2CA
OOB = 0x7FFFFFF0
PART = 1 << 20
STAMP = 1 << 16

SX, SQKV, SWO, SW1, SB1, SW2, SB2, SOUT, SDBG, SWS = 32, 36, 40, 44, 48, 52, 56, 60, 64, 68
sW, sT, sRole, sJ = 3, 4, 5, 6
sSO = 7
sM0 = 72
sA0 = 73
sR = [74, 75, 76]
sOwn = 77
sPo = [78, 79, 80]
sPown = 81
sGB, sOne, sLo, sHi = 82, 83, 84, 85
sFl = 86
sIn = 87
sXo = 88
sM0h = 89
sRo = [90, 91, 92]
sOwnO = 93
sQ = 94
sSc = 95
sT0, sT1, sT2, sT3 = 96, 97, 98, 99
sCnt = 30
sTm = 8

def srd(d, base, n):
    return I(f"s_mov_b32 s{d}, s{base}\ns_mov_b32 s{d+1}, s{base+1}\ns_mov_b32 s{d+2}, {n}\ns_mov_b32 s{d+3}, 0x20000")

class Cfg:
    m = 2; perm = [0, 4, 1, 5, 2, 6, 3, 7]
    RM = 6; RA = 5
    stamps = False
    prog = True
    skip_attn = False

def common(c):
    m = c.m; ns = 8 // m; lm = m.bit_length() - 1; lns = ns.bit_length() - 1
    P = sum(v << (4 * i) for i, v in enumerate(c.perm))
    p = I(f"""
s_cmp_ge_u32 s2, 256
s_cbranch_scc1 Lend
s_load_dwordx8 s[8:15], s[0:1], 0
s_load_dwordx8 s[16:23], s[0:1], 32
s_load_dwordx4 s[24:27], s[0:1], 64
s_load_dwordx2 s[28:29], s[0:1], 80
""")
    if c.stamps: p += I("s_memrealtime s[100:101]")
    p += I(f"""
v_lshrrev_b32 v1, 6, v0
v_cmp_eq_u32 vcc, 0, v0
v_readfirstlane_b32 s{sW}, v1
v_mov_b32 v2, {OOB}
v_cndmask_b32 v7, v2, v0, vcc
v_and_b32 v0, 63, v0
s_and_b32 s{sT0}, s2, 7
s_lshr_b32 s{sT1}, s2, 3
s_and_b32 s{sT2}, s{sT0}, {ns-1}
s_lshr_b32 s{sT0}, s{sT0}, {lns}
s_lshl_b32 s{sT2}, s{sT2}, {lm}
s_and_b32 s{sT3}, s{sT1}, {m-1}
s_add_u32 s{sT2}, s{sT2}, s{sT3}
s_lshl_b32 s{sT2}, s{sT2}, 2
s_lshr_b32 s{sRole}, {hex(P)}, s{sT2}
s_and_b32 s{sRole}, s{sRole}, 7
s_mul_i32 s{sT0}, s{sT0}, {32//m}
s_lshr_b32 s{sT1}, s{sT1}, {lm}
s_add_u32 s{sT}, s{sT0}, s{sT1}
s_min_u32 s{sJ}, s{sRole}, 6
s_lshl_b32 s{sM0}, s{sW}, 12
s_lshl_b32 s{sM0h}, s{sW}, 11
s_lshl_b32 s{sFl}, s{sT}, 7
; x address: (64T+16w+t16)*896 + g*16  -> v6
s_lshl_b32 s{sT0}, s{sT}, 6
s_lshl_b32 s{sT1}, s{sW}, 4
s_add_u32 s{sT0}, s{sT0}, s{sT1}
v_and_b32 v1, 15, v0
v_lshrrev_b32 v2, 4, v0
v_add_u32 v3, s{sT0}, v1
v_mul_u32_u24 v3, 896, v3
v_lshl_add_u32 v6, v2, 4, v3
s_cmp_ge_u32 s{sRole}, 4
s_cbranch_scc1 Lattn
""")
    return p

def build_srds():
    p = srd(SX, 8, 2048 * 896)
    return p
def build_srds2():
    p = []
    p += srd(SW1, 16, 448 * 3584) + srd(SQKV, 10, 448 * 2688) + srd(SWS, 28, 0x10000000) + srd(SB1, 18, 1792 * 2)
    p += srd(SWO, 12, 448 * 896) + srd(SW2, 20, 1792 * 896) + srd(SB2, 22, 896) + srd(SOUT, 24, 2048 * 896) + srd(SDBG, 26, 256)
    return p

def consts():
    return I(f"""
s_mov_b32 s{sGB}, {hex(f2u(GB))}
s_mov_b32 s{sOne}, 0x3f803f80
s_mov_b32 s{sLo}, 0x00003f80
s_mov_b32 s{sHi}, 0x3f800000
s_mov_b32 s{sSc}, {hex(f2u(SCL))}
""")

def round_scalars(hb_rows, attn):
    p = []
    for r in range(3):
        p += I(f"""
s_lshr_b32 s{sT0}, s{sW}, 1
s_add_u32 s{sT0}, s{sT0}, s{sJ}
s_add_u32 s{sT0}, s{sT0}, {1+2*r}
s_sub_u32 s{sT1}, s{sT0}, 7
s_cmp_ge_u32 s{sT0}, 7
s_cselect_b32 s{sT0}, s{sT1}, s{sT0}
s_mul_i32 s{sT1}, s{sT}, 7
s_add_u32 s{sT1}, s{sT1}, s{sT0}
s_lshl_b32 s{sT1}, s{sT1}, 3
s_add_u32 s{sT1}, s{sT1}, s{sRole}
s_lshl_b32 s{sT1}, s{sT1}, 13
s_add_u32 s{sPo[r]}, s{sT1}, {PART}
s_lshl_b32 s{sT0}, s{sT0}, 7
s_and_b32 s{sT1}, s{sW}, 1
s_lshl_b32 s{sT2}, s{sT1}, 5
s_add_u32 s{sT2}, s{sT2}, s{hb_rows}
s_mul_i32 s{sT2}, s{sT2}, 896
s_add_u32 s{sR[r]}, s{sT2}, s{sT0}
""")
        if attn:
            p += I(f"""
s_sub_u32 s{sT2}, s{sRole}, 4
s_mul_i32 s{sT2}, s{sT2}, 112
s_mul_i32 s{sT1}, s{sT1}, 28
s_add_u32 s{sT2}, s{sT2}, s{sT1}
s_mul_i32 s{sT2}, s{sT2}, 896
s_add_u32 s{sRo[r]}, s{sT2}, s{sT0}
""")
    p += I(f"""
s_mul_i32 s{sT1}, s{sT}, 7
s_add_u32 s{sT1}, s{sT1}, s{sJ}
s_lshl_b32 s{sT1}, s{sT1}, 16
s_add_u32 s{sIn}, s{sT1}, {PART}
s_lshl_b32 s{sT1}, s{sRole}, 13
s_add_u32 s{sPown}, s{sIn}, s{sT1}
s_lshl_b32 s{sT0}, s{sJ}, 7
s_lshl_b32 s{sT2}, s{sW}, {4 if attn else 5}
s_add_u32 s{sT2}, s{sT2}, s{hb_rows}
s_mul_i32 s{sT2}, s{sT2}, 896
s_add_u32 s{sOwn}, s{sT2}, s{sT0}
s_cmp_eq_u32 s{sRole}, 7
s_cselect_b32 s{sXo}, {OOB}, 0
""")
    if attn:
        p += I(f"""
s_sub_u32 s{sT2}, s{sRole}, 4
s_lshl_b32 s{sT2}, s{sT2}, 2
s_add_u32 s{sT2}, s{sT2}, s{sW}
s_mul_i32 s{sT2}, s{sT2}, {28*896}
s_add_u32 s{sOwnO}, s{sT2}, s{sT0}
""")
    return p

def dma_pat8(dst, RS, t0, t1, bit3=False):
    p = I(f"""
v_lshrrev_b32 v{t0}, 3, v0
v_mul_u32_u24 v{t0}, {RS}, v{t0}
v_and_b32 v{t1}, 7, v0
v_bfe_u32 v{dst}, v0, 4, 1
v_lshlrev_b32 v{dst}, 2, v{dst}
v_xor_b32 v{t1}, v{t1}, v{dst}
v_lshl_add_u32 v{dst}, v{t1}, 4, v{t0}
""")
    if bit3:
        p += I(f"v_xor_b32 v{t1}, 2, v{t1}\nv_lshl_add_u32 v{t1}, v{t1}, 4, v{t0}")
    for j in range(1, 4):
        src = t1 if (bit3 and j & 1) else dst
        p += I(f"v_add_u32 v{dst+j}, {j*(8*RS-1024)}, v{src}")
    return p

def g2_addrs(vT2, vT3, vF0, vP0, vPI, vXO, OREG, t0, t1, t2):
    return I(f"""
v_bfe_u32 v{t0}, v0, 2, 2
v_lshrrev_b32 v{t1}, 5, v0
v_lshl_add_u32 v{t1}, v{t1}, 2, v{t0}
v_lshlrev_b32 v{t1}, 7, v{t1}
v_and_b32 v{t2}, 3, v0
v_lshlrev_b32 v{t2}, 3, v{t2}
v_bfe_u32 v{t0}, v0, 4, 1
v_lshl_add_u32 v{t2}, v{t0}, 5, v{t2}
v_bfe_u32 v{t0}, v0, 3, 1
s_and_b32 s{sT0}, s{sW}, 1
v_xor_b32 v{t0}, s{sT0}, v{t0}
v_lshl_add_u32 v{t2}, v{t0}, 6, v{t2}
v_add_u32 v{vT3}, v{t1}, v{t2}
v_add_u32 v{vT3+1}, 0x10000, v{vT3}
s_lshr_b32 s{sT1}, s{sW}, 1
s_lshl_b32 s{sT2}, s{sT1}, 13
v_add_u32 v{vT2}, s{sT2}, v{vT3}
v_add_u32 v{vT2+1}, 0x10000, v{vT2}
v_lshlrev_b32 v{t0}, 4, v0
s_lshl_b32 s{sT2}, s{sT1}, 10
s_add_u32 s{sT2}, s{sT2}, {OREG}
v_add_u32 v{vF0}, s{sT2}, v{t0}
v_xor_b32 v{vF0+1}, 1024, v{vF0}
s_lshl_b32 s{sT2}, s{sT0}, 12
s_lshl_b32 s{sT3}, s{sT1}, 11
s_add_u32 s{sT2}, s{sT2}, s{sT3}
v_add_u32 v{vP0}, s{sT2}, v{t0}
v_xor_b32 v{vP0+1}, 2048, v{vP0}
v_mov_b32 v{vPI}, v{vP0}
s_lshl_b32 s{sT2}, s{sT}, 6
s_lshl_b32 s{sT3}, s{sT1}, 5
s_add_u32 s{sT2}, s{sT2}, s{sT3}
v_and_b32 v{t0}, 31, v0
v_add_u32 v{t0}, s{sT2}, v{t0}
v_mul_u32_u24 v{t0}, 896, v{t0}
v_lshrrev_b32 v{t1}, 5, v0
s_lshl_b32 s{sT2}, s{sJ}, 7
s_lshl_b32 s{sT3}, s{sT0}, 6
s_add_u32 s{sT2}, s{sT2}, s{sT3}
v_lshl_add_u32 v{t1}, v{t1}, 4, s{sT2}
v_add_u32 v{vXO}, v{t0}, v{t1}
v_mov_b32 v{vXO+1}, v{t1}
""")

def stats_chunk(raw, un, s1, s2, first):
    p = []
    for d in range(4):
        a = s1 + (d & 1); b = s2 + (d & 1)
        c1 = '0' if (first and d < 2) else f'v{a}'
        c2 = '0' if (first and d < 2) else f'v{b}'
        p += I(f"v_dot2_f32_bf16 v{a}, v{raw+d}, s{sOne}, {c1}\nv_dot2_f32_bf16 v{b}, v{raw+d}, v{raw+d}, {c2}")
        if un is not None:
            p += I(f"v_lshlrev_b32 v{un+2*d}, 16, v{raw+d}\nv_and_b32 v{un+2*d+1}, 0xffff0000, v{raw+d}")
    return p

def stats_final(s1, s2, t, double, red, r2out=None):
    p = I(f"v_add_f32 v{s1}, v{s1}, v{s1+1}\nv_add_f32 v{s2}, v{s2}, v{s2+1}")
    p += red(s1, s2, t)
    eps = hex(f2u(1e-5)); inv = hex(f2u(1.0 / 448))
    p += I(f"""
v_mul_f32 v{s1}, {inv}, v{s1}
v_mul_f32 v{s2}, {inv}, v{s2}
v_fma_f32 v{s2}, -v{s1}, v{s1}, v{s2}
v_max_f32 v{s2}, 0, v{s2}
v_add_f32 v{t}, {eps}, v{s2}
v_rsq_f32 v{t}, v{t}
""")
    if double or r2out is not None:
        p += I(f"""
v_mul_f32 v{s2}, v{s2}, v{t}
v_mul_f32 v{s2}, v{s2}, v{t}
v_add_f32 v{s2}, {eps}, v{s2}
v_rsq_f32 v{s2}, v{s2}
""")
        if double: p += I(f"v_mul_f32 v{t}, v{t}, v{s2}")
        else: p += I(f"v_mov_b32 v{r2out}, v{s2}")
    p += I(f"v_mul_f32 v{s2}, v{s1}, v{t}\nv_mov_b32 v{s1}, v{t}\nv_sub_f32 v{s2}, 0, v{s2}")
    return p

def red_g(s1, s2, t):
    p = []
    for sw in ('v_permlane32_swap_b32', 'v_permlane16_swap_b32'):
        p += I(f"""
v_mov_b32 v{t}, v{s1}
v_mov_b32 v{t+1}, v{s2}
{sw} v{s1}, v{t}
{sw} v{s2}, v{t+1}
v_add_f32 v{s1}, v{s1}, v{t}
v_add_f32 v{s2}, v{s2}, v{t+1}
""")
    return p
def red_row(s1, s2, t):
    p = []
    for k in (8, 4, 2, 1):
        p += I(f"v_add_f32_dpp v{s1}, v{s1}, v{s1} row_ror:{k} row_mask:0xf bank_mask:0xf\nv_add_f32_dpp v{s2}, v{s2}, v{s2} row_ror:{k} row_mask:0xf bank_mask:0xf")
    return p

def norm_chunk(un, pk, sc, sh, addr, off):
    p = []
    for e in range(8): p += I(f"v_fma_f32 v{un+e}, v{un+e}, v{sc}, v{sh}")
    for d in range(4): p += I(f"v_cvt_pk_bf16_f32 v{pk+d}, v{un+2*d}, v{un+2*d+1}")
    p += I(f"ds_write_b128 v{addr}, v[{pk}:{pk+3}] offset:{off}")
    return p

def gelu_group(zs, tmp, vA, pre=None):
    p = []
    n = len(zs)
    if pre: p += pre
    p += [Ins(f"v_mul_f32 v{tmp+i}, v{z}, v{z}") for i, z in enumerate(zs)]
    p += [Ins(f"v_fma_f32 v{tmp+i}, v{tmp+i}, s{sGB}, v{vA}") for i in range(n)]
    p += [Ins(f"v_mul_f32 v{tmp+i}, v{tmp+i}, v{z}") for i, z in enumerate(zs)]
    p += [Ins(f"v_exp_f32 v{tmp+i}, v{tmp+i}") for i in range(n)]
    p += [Ins(f"v_add_f32 v{tmp+i}, 1.0, v{tmp+i}") for i in range(n)]
    p += [Ins(f"v_rcp_f32 v{tmp+i}, v{tmp+i}") for i in range(n)]
    p += [Ins(f"v_mul_f32 v{tmp+i}, v{tmp+i}, v{z}") for i, z in enumerate(zs)]
    return p

class Slot:
    def __init__(self, srd, base, off, vpat, m0, ninstr, trs, mfmas, cap):
        self.srd, self.base, self.off, self.vpat, self.m0, self.ninstr = srd, base, off, vpat, m0, ninstr
        self.trs = trs
        self.mfmas = mfmas
        self.cap = cap

def dma_ops(n, s, R):
    setup = I(f"s_add_u32 s{sSO}, s{s.base}, {s.off}\ns_add_u32 m0, s{s.m0}, {(n % R) * 16384}")
    d = [Ins(f"buffer_load_dwordx4 v{s.vpat+j}, s[{s.srd}:{s.srd+3}], s{sSO} offen offset:{j*1024} lds", tag=('slot', n)) for j in range(s.ninstr)]
    return setup, d

def tr(dst, vlo, base, off, acc=False):
    a = base + off
    v = vlo + (a >> 16); a &= 0xffff
    r = 'a' if acc else 'v'
    return Ins(f"ds_read_b64_tr_b16 {r}[{dst}:{dst+1}], v{v} offset:{a}")

def main_loop(slots, R, fill, pre_m, post_m, first_fill=None, span_lim={}):
    p = []
    N = len(slots)
    for n in range(N + 1):
        if n < N:
            p.append(Wait(vm=[('slot', n)], lgkm0=True)); p += I("s_barrier")
        else:
            p.append(Wait(lgkm0=True))
        trs = slots[n].trs((n % R) * 16384) if n < N else []
        nn = n + R - 1
        setup, dm = dma_ops(nn, slots[nn], R) if nn < N else ([], [])
        ms = list(pre_m.get(n, [])) + (slots[n - 1].mfmas if n >= 1 else []) + list(post_m.get(n, []))
        fl = fill.get(n, [])
        if not ms:
            ff = first_fill or []
            p += trs + ff + setup + dm + fl
            continue
        G = len(ms)
        gaps = [[] for _ in range(G)]
        caps = [28.0 if x.passes == 8 else 12.0 for x in ms]
        k = 0; g = 0
        while k < len(trs):
            per = 2 if ms[g].passes == 8 else 1
            if g == G - 1: per = len(trs) - k
            gaps[g] += trs[k:k + per]; k += per; g = min(g + 1, G - 1)
        if dm:
            g0 = min(g, G - 1) if len(trs) <= 8 else G // 2
            span = max(G - 1 - g0, 1)
            gaps[max(g0 - 1, 0)] += setup
            for i, d in enumerate(dm):
                gaps[min(g0 + (i * span) // len(dm), G - 1)].append(d)
        rem = [max(0.01, caps[i] - sum(x.cost for x in gaps[i]) - (8 if i == G - 1 else 0)) for i in range(G)]
        if n in span_lim:
            lo, hi = span_lim[n]
            parts = [[] for _ in range(lo)] + split_cost(fl, rem[lo:hi]) + [[] for _ in range(G - hi)]
        else:
            parts = split_cost(fl, rem)
        for i in range(G):
            p.append(ms[i]); p += gaps[i] + parts[i]
    return p

def spread(fill, ops, it0, it1):
    parts = split_cost(ops, [1] * (it1 - it0 + 1))
    for i, x in enumerate(parts):
        fill[it0 + i] = interleave(fill.get(it0 + i, []), x)

def mf32(d, a, b, c, areg='v', breg='a'):
    cc = f"v[{c}:{c+15}]" if c is not None else "0"
    return Ins(f"v_mfma_f32_32x32x16_bf16 v[{d}:{d+15}], {areg}[{a}:{a+3}], {breg}[{b}:{b+3}], {cc}")
def mf16(d, a, b, c):
    cc = f"v[{c}:{c+3}]" if c is not None else "0"
    return Ins(f"v_mfma_f32_16x16x32_bf16 v[{d}:{d+3}], {a[0]}[{a[1]}:{a[1]+3}], {b[0]}[{b[1]}:{b[1]+3}], {cc}")

AB = [32, 48]
def pair_slot(n, srd_, base, off, vD2, vT2, acc, fr, first):
    ab = AB[n & 1]
    trs = lambda lb: [tr(ab + ks * 4 + h * 2, vT2, lb, ks * 2048 + h * 1024) for ks in range(4) for h in range(2)]
    ms = [mf32(acc + tt * 16, ab + ks * 4, fr + ks * 8 + tt * 4, None if (first and ks == 0) else acc + tt * 16) for ks in range(4) for tt in range(2)]
    return Slot(srd_, base, off, vD2, sM0, 4, trs, ms, 28)
def own_slot(n, srd_, base, off, vD2, vT3, acc, fr, nks):
    ab = 192 + 32 * (n & 1)
    trs = lambda lb: [tr(ab + ks * 4 + h * 2, vT3, lb, ks * 2048 + h * 1024, acc=True) for ks in range(nks) for h in range(2)]
    ms = [mf32(acc, ab + ks * 4, fr + ks * 8, acc, areg='a') for ks in range(nks)]
    return Slot(srd_, base, off, vD2, sM0 if nks == 8 else sM0h, nks // 2, trs, ms, 28)

def frag_reads(vF0, ks0, nks, areg0):
    return [Ins(f"ds_read_b128 a[{areg0 + k*8 + t*4}:{areg0 + k*8 + t*4 + 3}], v{vF0 + t} offset:{(ks0 + k) * 2048}") for k in range(nks) for t in range(2)]

def part_store(acc, pk, vP0, so, ntt=2):
    p = []
    for tt in range(ntt):
        for c in range(2):
            q = pk + ((tt * 2 + c) % 4) * 4
            for d in range(4):
                p += I(f"v_cvt_pk_bf16_f32 v{q+d}, v{acc + tt*16 + c*8 + 2*d}, v{acc + tt*16 + c*8 + 2*d + 1}")
            p.append(Ins(f"buffer_store_dwordx4 v[{q}:{q+3}], v{vP0+tt}, s[{SWS}:{SWS+3}], s{so} offen offset:{c*1024} sc1", tag='part'))
    return p

def own_init_loads(t, vXO):
    p = []
    for c in range(2):
        p += I(f"buffer_load_dwordx4 v[{t+c*4}:{t+c*4+3}], v{vXO}, s[{SX}:{SX+3}], s{sXo} offen offset:{c*32}")
    for c in range(2):
        p += I(f"buffer_load_dwordx4 v[{t+8+c*4}:{t+8+c*4+3}], v{vXO+1}, s[{SB2}:{SB2+3}], s{sXo} offen offset:{c*32}")
    return p
def own_init(t, acc):
    p = []
    for k in range(4):
        b = t + 4 * k
        p += I(f"v_permlane32_swap_b32 v{b}, v{b+2}\nv_permlane32_swap_b32 v{b+1}, v{b+3}")
    for d in range(8):
        p += I(f"v_dot2_f32_bf16 v{acc+2*d}, v{t+d}, s{sLo}, 0\nv_dot2_f32_bf16 v{acc+2*d+1}, v{t+d}, s{sHi}, 0")
    for d in range(8):
        p += I(f"v_dot2_f32_bf16 v{acc+2*d}, v{t+8+d}, s{sLo}, v{acc+2*d}\nv_dot2_f32_bf16 v{acc+2*d+1}, v{t+8+d}, s{sHi}, v{acc+2*d+1}")
    return p

def clear_flag(vz, vtid0):
    return I(f"""
v_mov_b32 v{vz}, 0
v_mov_b32 v{vz+1}, 0
v_mov_b32 v{vz+2}, 0
v_mov_b32 v{vz+3}, 0
s_lshl_b32 s{sT0}, s{sRole}, 4
s_add_u32 s{sT0}, s{sT0}, s{sFl}
""") + I(f"buffer_store_dwordx4 v[{vz}:{vz+3}], v{vtid0}, s[{SWS}:{SWS+3}], s{sT0} offen sc1", tag='clr')
def announce(vone, vtid0):
    return I(f"v_mov_b32 v{vone}, 1\ns_lshl_b32 s{sT0}, s{sT}, 3") + [Wait(vm=['clr'])] + \
           I(f"buffer_atomic_add v{vone}, v{vtid0}, s[{SDBG}:{SDBG+3}], s{sT0} offen sc1")

def tail(c, acc, vPI, vXO, vDbg, ld, t, pre, vP0=None, pk=None):
    p = []
    if vP0 is not None:
        p += I(f"s_cmp_lg_u32 s{sRole}, 7\ns_cbranch_scc1 {pre}_own\ns_nop 7\ns_nop 3")
        p += part_store(acc, pk, vP0, sPown, ntt=1)
        p += I(f"{pre}_own:")
    if c.stamps: p += I("s_memrealtime s[12:13]")
    p += I(f"""
v_cmp_eq_u32 vcc, 0, v0
v_mov_b32 v{t}, {OOB}
v_mov_b32 v{t+1}, 1
s_lshl_b32 s{sT0}, s{sRole}, 4
s_lshl_b32 s{sT1}, s{sW}, 2
v_cndmask_b32 v{t}, v{t}, v0, vcc
s_add_u32 s{sT0}, s{sT0}, s{sT1}
s_add_u32 s{sT0}, s{sT0}, s{sFl}
s_waitcnt vmcnt(0)
buffer_store_dword v{t+1}, v{t}, s[{SWS}:{SWS+3}], s{sT0} offen sc1
""")
    if vP0 is not None:
        p += I(f"s_cmp_eq_u32 s{sRole}, 7\ns_cbranch_scc1 {pre}_fin")
    p += I(f"""
v_and_b32 v{t+2}, 31, v0
v_lshlrev_b32 v{t+2}, 2, v{t+2}
s_mov_b32 s{sCnt}, 0x10000
v_mov_b32 v{t+3}, 0
s_lshl_b32 s{sT1}, s{sT}, 3
{pre}_dbg:
v_readfirstlane_b32 s{sT0}, v{vDbg}
s_sub_u32 s{sCnt}, s{sCnt}, 1
s_cselect_b32 s{sT0}, 8, s{sT0}
s_cmp_ge_u32 s{sT0}, 8
s_cbranch_scc1 {pre}_poll0
buffer_load_dword v{vDbg}, v{t+3}, s[{SDBG}:{SDBG+3}], s{sT1} offen sc1
s_waitcnt vmcnt(0)
s_branch {pre}_dbg
{pre}_poll0:
s_mov_b32 s{sCnt}, 0x10000
{pre}_poll:
buffer_load_dword v{t+1}, v{t+2}, s[{SWS}:{SWS+3}], s{sFl} offen sc1
s_sub_u32 s{sCnt}, s{sCnt}, 1
s_cbranch_scc1 {pre}_go
s_waitcnt vmcnt(0)
v_cmp_ne_u32 vcc, 1, v{t+1}
s_nop 4
s_cbranch_vccnz {pre}_poll
{pre}_go:
""")
    if c.stamps: p += I("s_memrealtime s[14:15]")
    for k in range(7):
        p += I(f"s_add_u32 s{sT0}, s{sRole}, {k+1}\ns_and_b32 s{sT0}, s{sT0}, 7\ns_lshl_b32 s{sT0}, s{sT0}, 13\ns_add_u32 s{sT0}, s{sT0}, s{sIn}")
        for cc in range(2):
            r = ld + k * 8 + cc * 4
            p += I(f"buffer_load_dwordx4 v[{r}:{r+3}], v{vPI}, s[{SWS}:{SWS+3}], s{sT0} offen offset:{cc*1024} sc1")
    for k in range(7):
        for d in range(8):
            p += I(f"v_dot2_f32_bf16 v{acc+2*d}, v{ld+k*8+d}, s{sLo}, v{acc+2*d}\nv_dot2_f32_bf16 v{acc+2*d+1}, v{ld+k*8+d}, s{sHi}, v{acc+2*d+1}")
    for d in range(8):
        p += I(f"v_cvt_pk_bf16_f32 v{ld+d}, v{acc+2*d}, v{acc+2*d+1}")
    for cc in range(2):
        b = ld + 4 * cc
        p += I(f"v_permlane32_swap_b32 v{b}, v{b+2}\nv_permlane32_swap_b32 v{b+1}, v{b+3}")
    for cc in range(2):
        p += I(f"buffer_store_dwordx4 v[{ld+4*cc}:{ld+4*cc+3}], v{vXO}, s[{SOUT}:{SOUT+3}], 0 offen offset:{cc*32}")
    p += I(f"{pre}_fin:")
    if c.stamps:
        p += I(f"""
s_waitcnt vmcnt(0)
s_memrealtime s[16:17]
s_memtime s[18:19]
s_waitcnt lgkmcnt(0)
s_sub_u32 s18, s18, s20
v_mov_b32 v{ld}, s100
v_mov_b32 v{ld+1}, s10
v_mov_b32 v{ld+2}, s12
v_mov_b32 v{ld+3}, s14
v_mov_b32 v{ld+4}, s16
v_mov_b32 v{ld+5}, s18
v_mov_b32 v{ld+6}, s{sRole}
v_mov_b32 v{ld+7}, s{sT}
s_lshl_b32 s{sT0}, s2, 7
s_lshl_b32 s{sT1}, s{sW}, 5
s_add_u32 s{sT0}, s{sT0}, s{sT1}
s_add_u32 s{sT0}, s{sT0}, {STAMP}
buffer_store_dwordx4 v[{ld}:{ld+3}], v{t}, s[{SWS}:{SWS+3}], s{sT0} offen
buffer_store_dwordx4 v[{ld+4}:{ld+7}], v{t}, s[{SWS}:{SWS+3}], s{sT0} offen offset:16
""")
    p += I("s_endpgm")
    return p

def stamp_main(c):
    return I("s_memrealtime s[10:11]\ns_memtime s[20:21]") if c.stamps else []

def mlp(c):
    R = c.RM
    XH = R * 16384; BT = XH + 57344
    vD1, vD2, vT1, vT2, vT3 = 8, 12, 16, 18, 20
    vHW, vXF, vF0, vBA, vP0, vPI, vGA = 22, 23, 24, 26, 27, 29, 30
    vXO = 176; vDbg = 178; vXW = 179; vSC, vSH = 180, 182
    accA, accB, accC, bias, GT, PK = 64, 96, 128, 160, 184, 192
    RAW = 32
    UN = [96 + 8 * i for i in range(8)] + [208 + 8 * i for i in range(6)]
    p = I("s_waitcnt lgkmcnt(0)") + build_srds()
    for i in range(14):
        p += I(f"buffer_load_dwordx4 v[{RAW+4*i}:{RAW+4*i+3}], v6, s[{SX}:{SX+3}], 0 offen offset:{i*64}")
    p += build_srds2() + consts()
    slots = []
    for r in range(3):
        acc = [accA, accB, accA][r]
        for s in range(7):
            n = len(slots); ab = AB[n & 1]
            trs = lambda lb, ab=ab: [tr(ab + ks * 4 + h * 2, vT1, lb, ks * 2048 + h * 512) for ks in range(4) for h in range(2)]
            ms = [mf32(acc + tt * 16, ab + ks * 4, s * 32 + ks * 8 + tt * 4, bias if (s == 0 and ks == 0) else acc + tt * 16) for ks in range(4) for tt in range(2)]
            slots.append(Slot(SW1, sA0, s * 64 * 3584 + r * 256, vD1, sM0, 4, trs, ms, 28))
    order = [(0, k) for k in range(4)] + [(1, k) for k in range(4)] + [(0, 4), (0, 5), (1, 4), (1, 5)] + [(2, k) for k in range(6)]
    for r, kb in order:
        slots.append(pair_slot(len(slots), SW2, sR[r], kb * 64 * 896, vD2, vT2, [accB, accC, accA][r], kb * 32, kb == 0))
    for u in range(3):
        slots.append(own_slot(len(slots), SW2, sOwn, u * 128 * 896, vD2, vT3, accB, u * 64, 8))
    p += dma_pat8(vD1, 3584, 1, 2)
    p += I(f"""
s_mul_i32 s{sT0}, s{sRole}, 6
s_lshr_b32 s{sT1}, s{sW}, 1
s_add_u32 s{sT0}, s{sT0}, s{sT1}
s_lshl_b32 s{sT0}, s{sT0}, 7
s_and_b32 s{sT1}, s{sW}, 1
s_mul_i32 s{sT1}, s{sT1}, {32*3584}
s_add_u32 s{sA0}, s{sT0}, s{sT1}
""")
    p += I(f"""
s_mul_i32 s{sT0}, s{sRole}, 768
s_lshl_b32 s{sT1}, s{sW}, 8
s_add_u32 s{sT0}, s{sT0}, s{sT1}
v_lshlrev_b32 v1, 2, v0
s_cmp_lt_u32 s{sW}, 3
s_cselect_b32 s{sT0}, s{sT0}, {OOB}
buffer_load_dword v5, v1, s[{SB1}:{SB1+3}], s{sT0} offen
""")
    for n in range(R - 1):
        su, d = dma_ops(n, slots[n], R); p += su + d
    p += clear_flag(PK, 7)
    p += dma_pat8(vD2, 896, 1, 2)
    p += I(f"s_mul_i32 s{sCnt}, s{sRole}, 384")
    p += round_scalars(sCnt, False)
    p += g2_addrs(vT2, vT3, vF0, vP0, vPI, vXO, XH, 1, 2, 3)
    p += I(f"""
v_lshrrev_b32 v1, 5, v0
v_lshl_add_u32 v{vT1}, v1, 9, v{vT2}
v_add_u32 v{vT1+1}, 0x10000, v{vT1}
v_lshlrev_b32 v2, 4, v0
v_add_u32 v{vXF}, {XH}, v2
v_add_u32 v{vHW}, s{sM0}, v{vXF}
s_lshl_b32 s{sT0}, s{sW}, 7
s_add_u32 s{sT0}, s{sT0}, {BT}
v_lshl_add_u32 v{vBA}, v1, 4, s{sT0}
v_mov_b32 v{vGA}, {hex(f2u(GA))}
v_and_b32 v1, 15, v0
v_bfe_u32 v2, v0, 4, 1
v_lshl_add_u32 v1, v2, 5, v1
v_lshlrev_b32 v1, 4, v1
v_lshrrev_b32 v2, 5, v0
v_lshl_add_u32 v1, v2, 11, v1
s_lshr_b32 s{sT0}, s{sW}, 1
s_lshl_b32 s{sT0}, s{sT0}, 10
s_and_b32 s{sT1}, s{sW}, 1
s_lshl_b32 s{sT1}, s{sT1}, 8
s_add_u32 s{sT0}, s{sT0}, s{sT1}
s_add_u32 s{sT0}, s{sT0}, {XH}
v_add_u32 v{vXW}, s{sT0}, v1
""")
    for i in range(14): p += stats_chunk(RAW + 4 * i, UN[i], vSC, vSH, i == 0)
    p += stats_final(vSC, vSH, 1, True, red_g)
    nrm = [norm_chunk(UN[i], PK + 4 * (i % 4), vSC, vSH, vXW, i * 4096) for i in range(14)]
    fill = {}
    bt = I(f"""
v_lshlrev_b32 v2, 16, v5
v_and_b32 v3, 0xffff0000, v5
s_lshl_b32 s{sT0}, s{sW}, 9
s_add_u32 s{sT0}, s{sT0}, {BT}
v_lshl_add_u32 v1, v0, 3, s{sT0}
ds_write_b64 v1, v[2:3]
""")
    p += bt
    if c.prog:
        p += interleave(nrm[0], nrm[1])
        for s in range(1, 7): fill[s - 1] = interleave(nrm[2 * s], nrm[2 * s + 1])
    else:
        for i in range(0, 14, 2): p += interleave(nrm[i], nrm[i + 1])
    p += stamp_main(c)
    xfr = lambda s: [Ins(f"ds_read_b128 a[{s*32+k*4}:{s*32+k*4+3}], v{vXF} offset:{s*8192+k*1024}") for k in range(8)]
    biasr = lambda r: [Ins(f"ds_read_b128 v[{bias+4*q}:{bias+4*q+3}], v{vBA} offset:{r*512+q*32}") for q in range(4)]
    ff = xfr(0) + biasr(0)
    for s in range(1, 7): fill[s] = interleave(xfr(s), fill.get(s, []))
    spread(fill, biasr(1), 6, 6); spread(fill, biasr(2), 13, 13)
    spread(fill, announce(4, 7), 6, 6)
    def gelu_round(r, acc):
        ops = []
        k = 0
        for tt in range(2):
            for cc in range(2):
                pk = PK + 4 * (k % 4)
                for hh in range(2):
                    zs = [acc + tt * 16 + cc * 8 + hh * 4 + i for i in range(4)]
                    tmp = GT + 4 * (hh)
                    ops += gelu_group(zs, tmp, vGA)
                    ops += I(f"v_cvt_pk_bf16_f32 v{pk+2*hh}, v{tmp}, v{tmp+1}\nv_cvt_pk_bf16_f32 v{pk+2*hh+1}, v{tmp+2}, v{tmp+3}")
                ops += I(f"ds_write_b128 v{vHW}, v[{pk}:{pk+3}] offset:{r*16384 + cc*2048 + tt*1024}")
                k += 1
        return ops
    spread(fill, gelu_round(0, accA), 8, 14)
    spread(fill, gelu_round(1, accB), 15, 21)
    spread(fill, gelu_round(2, accA), 22, 28)
    for b, it in enumerate([17, 19, 22, 23, 29, 30]):
        spread(fill, frag_reads(vF0, 4 * b, 4, 32 * b), it, it + (1 if b < 2 else 0))
    spread(fill, part_store(accB, PK, vP0, sPo[0]), 32, 33)
    spread(fill, part_store(accC, PK, vP0, sPo[1]), 34, 35)
    XI = 208
    spread(fill, own_init_loads(XI, vXO) + I(f"v_mov_b32 v4, 0\ns_lshl_b32 s{sT0}, s{sT}, 3\nbuffer_load_dword v{vDbg}, v4, s[{SDBG}:{SDBG+3}], s{sT0} offen sc1"), 31, 31)
    spread(fill, own_init(XI, accB), 37, 39)
    fill[40] = part_store(accA, PK, vP0, sPo[2])
    p += main_loop(slots, R, fill, {}, {}, ff)
    p += I("s_nop 7\ns_nop 3")
    p += tail(c, accB, vPI, vXO, vDbg, 32, 1, "Lm")
    return p

def attn(c):
    R = c.RA
    XS = R * 16384; RT = XS + 71680
    vDH, vD2, vDQ = 8, 12, 16
    vTH, vTQ0, vTQ1, vT2, vT3 = 20, 22, 24, 26, 28
    vXF, vOW = 30, 31
    vF0, vP0, vPI, vXO = 64, 66, 68, 252
    vGA, vPM, vM, vCs, vCp, vC0, vR2, vBi = 70, 71, 72, 76, 80, 84, 88, 92
    vDbg = 69; vXF2 = 254
    HF = 96
    X, Y, accH, Qp, Kp = 120, 160, 200, 216, 232
    RAWm = [32 + 4 * i for i in range(8)] + [96 + 4 * i for i in range(6)]
    UN = [120 + 8 * i for i in range(10)] + [216 + 8 * i for i in range(4)]
    RAWh = 72
    vSC, vSH, vSC2, vSH2 = 88, 90, 92, 94
    sA0h = 31
    xf = lambda ks, tau: (('a', (ks * 4 + tau - 1) * 4) if tau >= 1 else (('a', 224 + ks * 4) if ks < 8 else ('v', HF + (ks - 8) * 4)))
    p = I("Lattn:\ns_waitcnt lgkmcnt(0)") + build_srds()
    for i in range(14):
        p += I(f"buffer_load_dwordx4 v[{RAWm[i]}:{RAWm[i]+3}], v6, s[{SX}:{SX+3}], 0 offen offset:{i*64}")
    p += I(f"""
s_lshl_b32 s{sT0}, s{sT}, 6
s_lshl_b32 s{sT1}, s{sW}, 2
s_add_u32 s{sT0}, s{sT0}, s{sT1}
s_sub_u32 s{sT0}, s{sT0}, 16
v_lshrrev_b32 v1, 4, v0
v_add_u32 v1, s{sT0}, v1
v_mul_u32_u24 v1, 896, v1
v_and_b32 v2, 15, v0
v_lshl_add_u32 v1, v2, 4, v1
v_cmp_gt_u32 vcc, 8, v2
v_mov_b32 v3, {OOB}
s_cmp_eq_u32 s{sT}, 0
s_cselect_b32 s{sT1}, {OOB}, 0
v_and_b32 v1, 0x3fffffff, v1
v_cndmask_b32 v3, v3, v1, vcc
""")
    for j in range(4):
        p += I(f"buffer_load_dwordx4 v[{RAWh+4*j}:{RAWh+4*j+3}], v{3 if j == 3 else 1}, s[{SX}:{SX+3}], s{sT1} offen offset:{j*256}")
    p += build_srds2() + consts()
    slots = []
    for u in range(4):
        n = len(slots); ab = AB[n & 1]; nks = 4 if u < 3 else 2
        trs = lambda lb, ab=ab, nks=nks: [tr(ab + ks * 4 + h * 2, vTH, lb, ks * 4096 + h * 512) for ks in range(nks) for h in range(2)]
        ms = [mf16(accH + tt * 4, ('v', ab + ks * 4), xf(4 * u + ks, tt + 1), None if (u == 0 and ks == 0) else accH + tt * 4) for ks in range(nks) for tt in range(4)]
        slots.append(Slot(SW1, sA0 if u < 3 else sA0h, u * 128 * 3584, vDH, sM0 if u < 3 else sM0h, nks, trs, ms, 12))
    for sec, acc in ((0, X), (1, Y), (2, X)):
        for s in range(7):
            n = len(slots); ab = AB[n & 1]
            trs = lambda lb, ab=ab: [tr(ab + ks * 8 + hf * 4 + h * 2, vTQ1 if hf else vTQ0, lb, ks * 8192 + h * 1024) for ks in range(2) for hf in range(2) for h in range(2)]
            ms = []
            taus = range(1, 5) if sec == 0 else range(5)
            for ks in range(2):
                for hf in range(2):
                    for tau in taus:
                        d = acc + (hf * 4 + tau - 1) * 4 if sec == 0 else acc + (hf * 5 + tau) * 4
                        a_ = ('v', ab + ks * 8 + hf * 4); b_ = xf(2 * s + ks, tau)
                        if sec == 2: a_, b_ = b_, a_
                        ms.append(mf16(d, a_, b_, None if (s == 0 and ks == 0) else d))
            slots.append(Slot(SQKV, sQ, s * 64 * 2688 + sec * 896, vDQ, sM0, 4, trs, ms, 12))
    racc = [Y, 80, X]
    for r in range(3): slots.append(pair_slot(len(slots), SW2, sR[r], 0, vD2, vT2, racc[r], 0, True))
    for r in range(3):
        for k in range(2): slots.append(pair_slot(len(slots), SWO, sRo[r], k * 56 * 896, vD2, vT2, racc[r], 32 + 32 * k, False))
    slots.append(own_slot(len(slots), SW2, sOwn, 0, vD2, vT3, accH, 0, 4))
    slots.append(own_slot(len(slots), SWO, sOwnO, 0, vD2, vT3, accH, 32, 8))
    assert len(slots) == 36
    p += dma_pat8(vDH, 3584, 1, 2, bit3=True)
    p += I(f"""
s_add_u32 s{sT0}, s{sRole}, 20
s_lshl_b32 s{sT0}, s{sT0}, 7
s_mul_i32 s{sT1}, s{sW}, {32*3584}
s_add_u32 s{sA0}, s{sT0}, s{sT1}
s_mul_i32 s{sT1}, s{sW}, {16*3584}
s_add_u32 s{sA0h}, s{sT0}, s{sT1}
""")
    assert R - 1 <= 4
    p += I(f"""
s_lshl_b32 s{sT1}, s{sW}, 5
s_add_u32 s{sT0}, s{sT0}, s{sT1}
v_lshrrev_b32 v1, 4, v0
v_lshlrev_b32 v1, 3, v1
buffer_load_dwordx2 v[4:5], v1, s[{SB1}:{SB1+3}], s{sT0} offen
""")
    for n in range(R - 1):
        su, d = dma_ops(n, slots[n], R); p += su + d
    p += clear_flag(248, 7)
    p += dma_pat8(vD2, 896, 1, 2)
    p += I(f"s_add_u32 s{sCnt}, s{sRole}, 20\ns_lshl_b32 s{sCnt}, s{sCnt}, 6")
    p += round_scalars(sCnt, True)
    p += g2_addrs(vT2, vT3, vF0, vP0, vPI, vXO, XS, 1, 2, 3)
    p += I(f"""
v_lshrrev_b32 v1, 4, v0
v_and_b32 v2, 15, v0
v_lshlrev_b32 v3, 1, v1
v_xor_b32 v2, v2, v3
v_mul_u32_u24 v1, 2688, v1
v_lshl_add_u32 v{vDQ}, v2, 4, v1
v_add_u32 v{vDQ+1}, {4*2688-1024}, v{vDQ}
v_xor_b32 v2, 8, v2
v_lshl_add_u32 v3, v2, 4, v1
v_add_u32 v{vDQ+2}, {2*(4*2688-1024)}, v3
v_add_u32 v{vDQ+3}, {3*(4*2688-1024)}, v3
s_sub_u32 s{sT0}, s{sRole}, 4
s_mul_i32 s{sT0}, s{sT0}, 224
s_cmp_eq_u32 s{sRole}, 7
s_cselect_b32 s{sT1}, 32, 0
s_sub_u32 s{sT0}, s{sT0}, s{sT1}
s_mul_i32 s{sT2}, s{sW}, {16*2688}
s_add_u32 s{sQ}, s{sT0}, s{sT2}
s_mul_i32 s{sT2}, s{sW}, 56
s_add_u32 s{sT1}, s{sT1}, s{sT2}
v_bfe_u32 v1, v0, 2, 2
v_lshrrev_b32 v2, 4, v0
v_lshl_add_u32 v3, v2, 3, v1
v_and_b32 v2, 1, v2
v_lshl_add_u32 v1, v2, 2, v1
v_lshlrev_b32 v1, 5, v1
v_and_b32 v2, 3, v0
v_lshl_add_u32 v2, v2, 3, s{sT1}
v_xor_b32 v{vTQ0}, v2, v1
v_add_u32 v2, 32, v2
v_xor_b32 v{vTQ1}, v2, v1
v_lshl_add_u32 v{vTQ0}, v3, 8, v{vTQ0}
v_lshl_add_u32 v{vTQ1}, v3, 8, v{vTQ1}
v_add_u32 v{vTQ0+1}, 0x10000, v{vTQ0}
v_add_u32 v{vTQ1+1}, 0x10000, v{vTQ1}
v_bfe_u32 v1, v0, 3, 1
v_bfe_u32 v2, v0, 4, 1
v_lshl_add_u32 v1, v1, 1, v2
v_xor_b32 v1, s{sW}, v1
v_lshlrev_b32 v1, 5, v1
v_and_b32 v2, 3, v0
v_lshl_add_u32 v1, v2, 3, v1
v_lshl_add_u32 v{vTH}, v3, 7, v1
v_add_u32 v{vTH+1}, 0x10000, v{vTH}
v_lshlrev_b32 v2, 4, v0
v_add_u32 v{vXF}, {XS}, v2
v_add_u32 v{vXF2}, {XS + 7*5120}, v2
v_and_b32 v1, 15, v0
v_bfe_u32 v2, v0, 4, 1
v_lshl_add_u32 v1, v2, 5, v1
v_lshlrev_b32 v1, 4, v1
v_lshrrev_b32 v2, 5, v0
v_lshl_add_u32 v1, v2, 3, v1
v_add_u32 v{vOW}, {XS}, v1
v_mov_b32 v{vGA}, {hex(f2u(GA))}
""")
    for i in range(14): p += stats_chunk(RAWm[i], UN[i], vSC, vSH, i == 0)
    for j in range(4): p += stats_chunk(RAWh + 4 * j, None, vSC2, vSH2, j == 0)
    p += interleave(stats_final(vSC, vSH, 1, False, red_g, r2out=6), stats_final(vSC2, vSH2, 248, False, red_row))
    vXW, vXWb, vXH = 249, 250, 251
    p += I(f"""
s_add_u32 s{sT0}, s{sW}, 1
s_lshl_b32 s{sT0}, s{sT0}, 10
v_add_u32 v{vXW}, s{sT0}, v{vXF}
v_add_u32 v{vXWb}, s{sT0}, v{vXF2}
v_and_b32 v1, 15, v0
s_lshl_b32 s{sT0}, s{sW}, 2
s_add_u32 s{sT0}, s{sT0}, {RT}
v_lshl_add_u32 v1, v1, 4, s{sT0}
ds_write_b32 v1, v6
v_bfe_u32 v1, v0, 2, 2
v_mul_u32_u24 v1, 5120, v1
v_and_b32 v2, 3, v0
v_lshrrev_b32 v3, 4, v0
v_lshl_add_u32 v2, v2, 4, v3
s_lshl_b32 s{sT0}, s{sW}, 6
s_add_u32 s{sT0}, s{sT0}, {XS}
v_lshl_add_u32 v2, v2, 4, s{sT0}
v_add_u32 v{vXH}, v1, v2
""")
    PKA = [32, 36, 40, 44]
    def nrm(i, pk): return norm_chunk(UN[i], pk, vSC, vSH, vXW if i < 7 else vXWb, (i % 7) * 5120)
    def nrm_h(j, un, pk):
        q = []
        for d in range(4): q += I(f"v_lshlrev_b32 v{un+2*d}, 16, v{RAWh+4*j+d}\nv_and_b32 v{un+2*d+1}, 0xffff0000, v{RAWh+4*j+d}")
        q += norm_chunk(un, pk, vSC2, vSH2, vXH, j * 4 * 5120)
        return q
    fill = {}
    for i in range(0, 14, 2): p += interleave(nrm(i, PKA[i % 4]), nrm(i + 1, PKA[(i + 1) % 4]))
    for j in range(3): p += nrm_h(j, 120 + 8 * j, PKA[j])
    q = nrm_h(3, 144, PKA[3]); wr = q.pop()
    p += q + I("v_and_b32 v1, 15, v0\nv_cmp_gt_u32 vcc, 8, v1\ns_nop 4\ns_and_saveexec_b64 s[22:23], vcc") + [wr] + I("s_mov_b64 exec, s[22:23]")
    p += I(f"""
v_lshlrev_b32 v{vBi}, 16, v4
v_and_b32 v{vBi+1}, 0xffff0000, v4
v_lshlrev_b32 v{vBi+2}, 16, v5
v_and_b32 v{vBi+3}, 0xffff0000, v5
""")
    p += stamp_main(c)
    def xfr(ks, tau):
        r = xf(ks, tau)
        return Ins(f"ds_read_b128 {r[0]}[{r[1]}:{r[1]+3}], v{vXF if ks < 7 else vXF2} offset:{(ks % 7) * 5120 + tau * 1024}")
    ff = [xfr(ks, t) for ks in range(4) for t in range(1, 5)]
    for u in range(1, 4): fill[u] = [xfr(ks, t) for ks in range(4 * u, min(4 * u + 4, 14)) for t in range(1, 5)]
    spread(fill, I(f"v_and_b32 v1, 15, v0\nv_lshlrev_b32 v1, 4, v1\nv_add_u32 v1, {RT}, v1\nds_read_b128 v[{vR2}:{vR2+3}], v1"), 3, 3)
    spread(fill, [xfr(ks, 0) for ks in range(14)], 4, 6)
    spread(fill, announce(4, 7), 5, 5)
    mk = I(f"""
v_and_b32 v1, 15, v0
v_lshrrev_b32 v2, 4, v0
v_cmp_eq_u32 vcc, 3, v2
v_lshlrev_b32 v2, 2, v2
v_and_b32 v3, 1, v0
v_cndmask_b32_e64 v{vPM}, -1, 0, vcc
v_cmp_eq_u32 vcc, 1, v3
v_add_u32 v2, v2, v3
v_mov_b32 v5, 0xffff
v_mov_b32 v6, 0xffff0000
v_cndmask_b32 v5, v5, v6, vcc
v_cmp_le_u32 vcc, v2, v1
v_add_u32 v2, 2, v2
v_mov_b32 v6, {hex(NEG)}
v_cndmask_b32 v{vM+2}, 0, v5, vcc
v_cmp_le_u32 vcc, v2, v1
v_xor_b32 v{vM}, v5, v{vM+2}
v_cndmask_b32 v{vM+3}, 0, v5, vcc
v_xor_b32 v{vM+1}, v5, v{vM+3}
""")
    mk += G(f"s_cmp_eq_u32 s{sT}, 0\ns_cselect_b32 s{sT1}, 0, -1")
    for base, mo in ((vCp, 0), (vCs, 2)):
        for r in range(4):
            mk += I(f"v_and_b32 v1, {'0xffff' if r % 2 == 0 else '0xffff0000'}, v{vM + mo + r // 2}\nv_cmp_ne_u32 vcc, 0, v1\nv_cndmask_b32_e64 v{base + r}, v6, 0, vcc")
    mk += I(f"v_mov_b32 v1, s{sT1}\nv_cmp_ne_u32 vcc, 0, v1")
    for r in range(4): mk += I(f"v_cndmask_b32 v{vC0+r}, v6, v{vCp+r}, vcc")
    spread(fill, mk, 7, 8)
    g = []
    for tt in range(4):
        zs = [accH + tt * 4 + i for i in range(4)]
        tmp = Kp + 4 * (tt & 1); pk = Kp + 8 + 2 * (tt & 1)
        pre = [Ins(f"v_fma_f32 v{z}, v{z}, v{vR2+tt}, v{vBi+i}") for i, z in enumerate(zs)]
        g += gelu_group(zs, tmp, vGA, pre)
        g += I(f"v_cvt_pk_bf16_f32 v{pk}, v{tmp}, v{tmp+1}\nv_cvt_pk_bf16_f32 v{pk+1}, v{tmp+2}, v{tmp+3}")
        g += I(f"ds_write_b64 v{vOW+0}, v[{pk}:{pk+1}] offset:{(tt >> 1) * 1024 + (tt & 1) * 256}".replace(f"v{vOW+0},", "v3,"))
    g = I(f"s_add_u32 s{sT2}, s{sM0h}, {8*2048}\nv_add_u32 v3, s{sT2}, v{vOW}") + g
    spread(fill, g, 9, 17)
    def pack(src, dst, ntile, stride):
        q = []
        for t in range(ntile):
            for hf in range(2):
                a = src + (hf * stride + t) * 4; d = dst + t * 4 + hf * 2
                q += I(f"v_cvt_pk_bf16_f32 v{d}, v{a}, v{a+1}\nv_cvt_pk_bf16_f32 v{d+1}, v{a+2}, v{a+3}")
            q += I(f"v_and_b32 v{dst+t*4+2}, v{vPM}, v{dst+t*4+2}\nv_and_b32 v{dst+t*4+3}, v{vPM}, v{dst+t*4+3}")
        return q
    spread(fill, pack(X, Qp, 4, 4), 12, 13)
    spread(fill, pack(Y, Kp, 5, 5), 19, 19)
    pre_m = {}; post_m = {}
    S = Y
    pre_m[20] = []
    for tt in range(4):
        pre_m[20].append(mf16(S + tt * 8, ('v', Kp + tt * 4), ('v', Qp + tt * 4), vC0 if tt == 0 else vCp))
        pre_m[20].append(mf16(S + tt * 8 + 4, ('v', Kp + tt * 4 + 4), ('v', Qp + tt * 4), vCs))
    P = accH; TT = Qp
    def rep(fmt): return [Ins(fmt.format(s=S + 8 * t, s1=S + 8 * t + 1, s2=S + 8 * t + 2, s3=S + 8 * t + 3, s4=S + 8 * t + 4, s5=S + 8 * t + 5, s6=S + 8 * t + 6, s7=S + 8 * t + 7,
                                         a=TT + 4 * t, b=TT + 4 * t + 1, m=TT + 4 * t + 2, u=TT + 4 * t + 3, p=P + 4 * t, p1=P + 4 * t + 1, p2=P + 4 * t + 2, p3=P + 4 * t + 3)) for t in range(4)]
    sm = []
    sm += rep("v_max3_f32 v{a}, v{s}, v{s1}, v{s4}") + rep("v_max3_f32 v{b}, v{s2}, v{s3}, v{s6}")
    sm += rep("v_max_f32 v{a}, v{a}, v{s5}") + rep("v_max_f32 v{b}, v{b}, v{s7}")
    sm += rep("v_max_f32 v{m}, v{a}, v{b}")
    for sw in ('v_permlane32_swap_b32', 'v_permlane16_swap_b32'):
        sm += rep("v_mov_b32 v{u}, v{m}") + rep(sw + " v{m}, v{u}") + rep("v_max_f32 v{m}, v{m}, v{u}")
    sm += rep("v_sub_f32 v{a}, v{a}, v{m}") + rep("v_sub_f32 v{b}, v{b}, v{m}")
    sm += rep(f"v_mul_f32 v{{a}}, s{sSc}, v{{a}}") + rep(f"v_mul_f32 v{{b}}, s{sSc}, v{{b}}")
    sm += rep("v_exp_f32 v{a}, v{a}") + rep("v_exp_f32 v{b}, v{b}")
    sm += rep("v_add_f32 v{m}, v{a}, v{b}")
    for sw in ('v_permlane32_swap_b32', 'v_permlane16_swap_b32'):
        sm += rep("v_mov_b32 v{u}, v{m}") + rep(sw + " v{m}, v{u}") + rep("v_add_f32 v{m}, v{m}, v{u}")
    sm += rep("v_rcp_f32 v{m}, v{m}")
    sm += rep("v_mul_f32 v{a}, v{a}, v{m}") + rep("v_mul_f32 v{b}, v{b}, v{m}")
    sm += rep("v_cvt_pk_bf16_f32 v{a}, v{a}, v{a}") + rep("v_cvt_pk_bf16_f32 v{b}, v{b}, v{b}")
    sm += rep(f"v_and_b32 v{{p}}, v{vM}, v{{a}}") + rep(f"v_and_b32 v{{p1}}, v{vM+1}, v{{b}}")
    sm += rep(f"v_and_b32 v{{p2}}, v{vM+2}, v{{a}}") + rep(f"v_and_b32 v{{p3}}, v{vM+3}, v{{b}}")
    spread(fill, sm, 21, 25)
    spread(fill, frag_reads(vF0, 8, 4, 0), 22, 23)
    Vp = Kp
    vp = []
    for hf in range(2):
        for tau in range(5):
            a = X + (hf * 5 + tau) * 4; d = Vp + hf * 10 + tau * 2
            vp += I(f"v_cvt_pk_bf16_f32 v{d}, v{a}, v{a+1}\nv_cvt_pk_bf16_f32 v{d+1}, v{a+2}, v{a+3}")
    fill[26] = vp
    post_m[26] = [mf16(X + (hf * 4 + tt) * 4, ('v', Vp + hf * 10 + 2 * tt), ('v', P + 4 * tt), None) for hf in range(2) for tt in range(4)]
    op = I(f"v_add_u32 v3, s{sM0}, v{vOW}")
    for hf in range(2):
        for tt in range(4):
            a = X + (hf * 4 + tt) * 4; d = Qp + (hf * 4 + tt) * 2
            op += I(f"v_cvt_pk_bf16_f32 v{d}, v{a}, v{a+1}\nv_cvt_pk_bf16_f32 v{d+1}, v{a+2}, v{a+3}")
            if hf: op += I(f"v_and_b32 v{d}, v{vPM}, v{d}\nv_and_b32 v{d+1}, v{vPM}, v{d+1}")
            op += I(f"ds_write_b64 v3, v[{d}:{d+1}] offset:{hf * 2048 + (tt >> 1) * 1024 + (tt & 1) * 256}")
    fill[27] = op
    fill[28] = frag_reads(vF0, 0, 8, 32)
    XI = Qp
    spread(fill, own_init_loads(XI, vXO) + I(f"v_mov_b32 v4, 0\ns_lshl_b32 s{sT0}, s{sT}, 3\nbuffer_load_dword v{vDbg}, v4, s[{SDBG}:{SDBG+3}], s{sT0} offen sc1"), 29, 29)
    spread(fill, part_store(racc[0], Kp, vP0, sPo[0]), 31, 32)
    spread(fill, own_init(XI, accH), 32, 34)
    spread(fill, part_store(racc[1], Kp, vP0, sPo[1]), 33, 34)
    fill[35] = part_store(racc[2], Kp, vP0, sPo[2])
    p += main_loop(slots, R, fill, pre_m, post_m, ff, span_lim={26: (0, 8)})
    p += I("s_nop 7\ns_nop 3")
    p += tail(c, accH, vPI, vXO, vDbg, 80, 1, "La", vP0=vP0, pk=Kp)
    return p

def finish(p):
    p = resolve_waits(flatten(p))
    p, n = pad_hazards(p)
    return p, n

def gen(path, c):
    cm = common(c)
    pm, n1 = finish(cm + mlp(c))
    pa, n2 = finish(cm + attn(c))
    k = next(i for i, x in enumerate(pa) if x.text == 'Lattn:')
    pa = pa[k:]
    hdr = open('parallel_sum__sliding_local_dilated__mixer_channel_mlp__prompt.s.ref').read().split('; Override launch')[0]
    t = hdr + f"; @launch grid=(256,1,1) block=(256,1,1) lds=163840\n.amdgcn_target \"amdgcn-amd-amdhsa--gfx950\"\n.text\n.globl {KN}\n.p2align 8\n.type {KN},@function\n{KN}:\n"
    t += render(pm) + render(pa) + "Lend:\ns_endpgm\n"
    t += f""".section .rodata,"a"
.p2align 6
.amdhsa_kernel {KN}
  .amdhsa_next_free_vgpr 512
  .amdhsa_next_free_sgpr 102
  .amdhsa_accum_offset 256
  .amdhsa_group_segment_fixed_size 0
  .amdhsa_kernarg_size 88
  .amdhsa_user_sgpr_count 2
  .amdhsa_user_sgpr_kernarg_segment_ptr 1
  .amdhsa_system_sgpr_workgroup_id_x 1
.end_amdhsa_kernel
"""
    open(path, 'w').write(t)
    auto = lambda p: sum(1 for x in p if x.note == 'auto')
    print(f"{path}: mlp {len(pm)} ins ({n1} pad, {auto(pm)} autowait), attn {len(pa)} ins ({n2} pad, {auto(pa)} autowait), {len(t)} bytes")

if __name__ == '__main__':
    c = Cfg()
    out = sys.argv[1] if len(sys.argv) > 1 else 'k.s'
    for a in sys.argv[2:]:
        k, v = a.split('='); setattr(c, k, eval(v))
    gen(out, c)
```

```python
import sys, struct
from asmlib import *

KN = "parallel_sum__sliding_local_dilated__mixer_channel_mlp__prompt_kernel"
def f2u(x): return struct.unpack('<I', struct.pack('<f', x))[0]
GA = -2.0 * 1.4426950408889634 * 0.7978845608028654
GB = GA * 0.044715
SCL = (28 ** -0.5) * 1.4426950408889634
NEG = 0xF149F2CA
OOB = 0x7FFFFFF0
PART = 1 << 20
STAMP = 1 << 16
STAMP2 = 1 << 18

SX, SQKV, SWO, SW1, SB1, SW2, SB2, SOUT, SDBG, SWS = 32, 36, 40, 44, 48, 52, 56, 60, 64, 68
sW, sT, sRole, sJ = 3, 4, 5, 6
sSO = 7
sM0 = 72
sA0 = 73
sR = [74, 75, 76]
sOwn = 77
sPo = [78, 79, 80]
sPown = 81
sGB, sOne, sLo, sHi = 82, 83, 84, 85
sFl = 86
sIn = 87
sXo = 88
sM0h = 89
sRo = [90, 91, 92]
sOwnO = 93
sQ = 94
sSc = 95
sT0, sT1, sT2, sT3 = 96, 97, 98, 99
sCnt = 30
sTm = 8

def srd(d, base, n):
    return I(f"s_mov_b32 s{d}, s{base}\ns_mov_b32 s{d+1}, s{base+1}\ns_mov_b32 s{d+2}, {n}\ns_mov_b32 s{d+3}, 0x20000")

class Cfg:
    m = 2; perm = [0, 4, 1, 5, 2, 6, 3, 7]
    RM = 6; RA = 5
    stamps = False
    prog = True
    it = False
    delay = 0
    osc = ''

def common(c):
    m = c.m; ns = 8 // m; lm = m.bit_length() - 1; lns = ns.bit_length() - 1
    P = sum(v << (4 * i) for i, v in enumerate(c.perm))
    p = I(f"""
s_cmp_ge_u32 s2, 256
s_cbranch_scc1 Lend
s_load_dwordx8 s[8:15], s[0:1], 0
s_load_dwordx8 s[16:23], s[0:1], 32
s_load_dwordx4 s[24:27], s[0:1], 64
s_load_dwordx2 s[28:29], s[0:1], 80
""")
    if c.stamps: p += I("s_memrealtime s[100:101]")
    if c.delay:
        p += I(f"s_mov_b32 s3, {c.delay}\nLdly:\ns_nop 15\ns_nop 15\ns_nop 15\ns_nop 15\ns_sub_u32 s3, s3, 1\ns_cmp_lg_u32 s3, 0\ns_cbranch_scc1 Ldly")
    p += I(f"""
v_lshrrev_b32 v1, 6, v0
v_cmp_eq_u32 vcc, 0, v0
v_readfirstlane_b32 s{sW}, v1
v_mov_b32 v2, {OOB}
v_cndmask_b32 v7, v2, v0, vcc
v_and_b32 v0, 63, v0
s_and_b32 s{sT0}, s2, 7
s_lshr_b32 s{sT1}, s2, 3
s_and_b32 s{sT2}, s{sT0}, {ns-1}
s_lshr_b32 s{sT0}, s{sT0}, {lns}
s_lshl_b32 s{sT2}, s{sT2}, {lm}
s_and_b32 s{sT3}, s{sT1}, {m-1}
s_add_u32 s{sT2}, s{sT2}, s{sT3}
s_lshl_b32 s{sT2}, s{sT2}, 2
s_lshr_b32 s{sRole}, {hex(P)}, s{sT2}
s_and_b32 s{sRole}, s{sRole}, 7
s_mul_i32 s{sT0}, s{sT0}, {32//m}
s_lshr_b32 s{sT1}, s{sT1}, {lm}
s_add_u32 s{sT}, s{sT0}, s{sT1}
s_min_u32 s{sJ}, s{sRole}, 6
s_lshl_b32 s{sM0}, s{sW}, 12
s_lshl_b32 s{sM0h}, s{sW}, 11
s_lshl_b32 s{sFl}, s{sT}, 7
; x address: (64T+16w+t16)*896 + g*16  -> v6
s_lshl_b32 s{sT0}, s{sT}, 6
s_lshl_b32 s{sT1}, s{sW}, 4
s_add_u32 s{sT0}, s{sT0}, s{sT1}
v_and_b32 v1, 15, v0
v_lshrrev_b32 v2, 4, v0
v_add_u32 v3, s{sT0}, v1
v_mul_u32_u24 v3, 896, v3
v_lshl_add_u32 v6, v2, 4, v3
s_cmp_ge_u32 s{sRole}, 4
s_cbranch_scc1 Lattn
""")
    return p

def build_srds():
    p = srd(SX, 8, 2048 * 896)
    return p
def build_srds2():
    p = []
    p += srd(SW1, 16, 448 * 3584) + srd(SQKV, 10, 448 * 2688) + srd(SWS, 28, 0x10000000) + srd(SB1, 18, 1792 * 2)
    p += srd(SWO, 12, 448 * 896) + srd(SW2, 20, 1792 * 896) + srd(SB2, 22, 896) + srd(SOUT, 24, 2048 * 896) + srd(SDBG, 26, 256)
    return p

def consts():
    return I(f"""
s_mov_b32 s{sGB}, {hex(f2u(GB))}
s_mov_b32 s{sOne}, 0x3f803f80
s_mov_b32 s{sLo}, 0x00003f80
s_mov_b32 s{sHi}, 0x3f800000
s_mov_b32 s{sSc}, {hex(f2u(SCL))}
""")

def round_scalars(hb_rows, attn):
    p = []
    for r in range(3):
        p += I(f"""
s_lshr_b32 s{sT0}, s{sW}, 1
s_add_u32 s{sT0}, s{sT0}, s{sJ}
s_add_u32 s{sT0}, s{sT0}, {1+2*r}
s_sub_u32 s{sT1}, s{sT0}, 7
s_cmp_ge_u32 s{sT0}, 7
s_cselect_b32 s{sT0}, s{sT1}, s{sT0}
s_mul_i32 s{sT1}, s{sT}, 7
s_add_u32 s{sT1}, s{sT1}, s{sT0}
s_lshl_b32 s{sT1}, s{sT1}, 3
s_add_u32 s{sT1}, s{sT1}, s{sRole}
s_lshl_b32 s{sT1}, s{sT1}, 13
s_add_u32 s{sPo[r]}, s{sT1}, {PART}
s_lshl_b32 s{sT0}, s{sT0}, 7
s_and_b32 s{sT1}, s{sW}, 1
s_lshl_b32 s{sT2}, s{sT1}, 5
s_add_u32 s{sT2}, s{sT2}, s{hb_rows}
s_mul_i32 s{sT2}, s{sT2}, 896
s_add_u32 s{sR[r]}, s{sT2}, s{sT0}
""")
        if attn:
            p += I(f"""
s_sub_u32 s{sT2}, s{sRole}, 4
s_mul_i32 s{sT2}, s{sT2}, 112
s_mul_i32 s{sT1}, s{sT1}, 28
s_add_u32 s{sT2}, s{sT2}, s{sT1}
s_mul_i32 s{sT2}, s{sT2}, 896
s_add_u32 s{sRo[r]}, s{sT2}, s{sT0}
""")
    p += I(f"""
s_mul_i32 s{sT1}, s{sT}, 7
s_add_u32 s{sT1}, s{sT1}, s{sJ}
s_lshl_b32 s{sT1}, s{sT1}, 16
s_add_u32 s{sIn}, s{sT1}, {PART}
s_lshl_b32 s{sT1}, s{sRole}, 13
s_add_u32 s{sPown}, s{sIn}, s{sT1}
s_lshl_b32 s{sT0}, s{sJ}, 7
s_lshl_b32 s{sT2}, s{sW}, {4 if attn else 5}
s_add_u32 s{sT2}, s{sT2}, s{hb_rows}
s_mul_i32 s{sT2}, s{sT2}, 896
s_add_u32 s{sOwn}, s{sT2}, s{sT0}
s_cmp_eq_u32 s{sRole}, 7
s_cselect_b32 s{sXo}, {OOB}, 0
""")
    if attn:
        p += I(f"""
s_sub_u32 s{sT2}, s{sRole}, 4
s_lshl_b32 s{sT2}, s{sT2}, 2
s_add_u32 s{sT2}, s{sT2}, s{sW}
s_mul_i32 s{sT2}, s{sT2}, {28*896}
s_add_u32 s{sOwnO}, s{sT2}, s{sT0}
""")
    return p

def dma_pat8(dst, RS, t0, t1, bit3=False):
    p = I(f"""
v_lshrrev_b32 v{t0}, 3, v0
v_mul_u32_u24 v{t0}, {RS}, v{t0}
v_and_b32 v{t1}, 7, v0
v_bfe_u32 v{dst}, v0, 4, 1
v_lshlrev_b32 v{dst}, 2, v{dst}
v_xor_b32 v{t1}, v{t1}, v{dst}
v_lshl_add_u32 v{dst}, v{t1}, 4, v{t0}
""")
    if bit3:
        p += I(f"v_xor_b32 v{t1}, 2, v{t1}\nv_lshl_add_u32 v{t1}, v{t1}, 4, v{t0}")
    for j in range(1, 4):
        src = t1 if (bit3 and j & 1) else dst
        p += I(f"v_add_u32 v{dst+j}, {j*(8*RS-1024)}, v{src}")
    return p

def g2_addrs(vT2, vT3, vF0, vP0, vPI, vXO, OREG, t0, t1, t2):
    return I(f"""
v_bfe_u32 v{t0}, v0, 2, 2
v_lshrrev_b32 v{t1}, 5, v0
v_lshl_add_u32 v{t1}, v{t1}, 2, v{t0}
v_lshlrev_b32 v{t1}, 7, v{t1}
v_and_b32 v{t2}, 3, v0
v_lshlrev_b32 v{t2}, 3, v{t2}
v_bfe_u32 v{t0}, v0, 4, 1
v_lshl_add_u32 v{t2}, v{t0}, 5, v{t2}
v_bfe_u32 v{t0}, v0, 3, 1
s_and_b32 s{sT0}, s{sW}, 1
v_xor_b32 v{t0}, s{sT0}, v{t0}
v_lshl_add_u32 v{t2}, v{t0}, 6, v{t2}
v_add_u32 v{vT3}, v{t1}, v{t2}
v_add_u32 v{vT3+1}, 0x10000, v{vT3}
s_lshr_b32 s{sT1}, s{sW}, 1
s_lshl_b32 s{sT2}, s{sT1}, 13
v_add_u32 v{vT2}, s{sT2}, v{vT3}
v_add_u32 v{vT2+1}, 0x10000, v{vT2}
v_lshlrev_b32 v{t0}, 4, v0
s_lshl_b32 s{sT2}, s{sT1}, 10
s_add_u32 s{sT2}, s{sT2}, {OREG}
v_add_u32 v{vF0}, s{sT2}, v{t0}
v_xor_b32 v{vF0+1}, 1024, v{vF0}
s_lshl_b32 s{sT2}, s{sT0}, 12
s_lshl_b32 s{sT3}, s{sT1}, 11
s_add_u32 s{sT2}, s{sT2}, s{sT3}
v_add_u32 v{vP0}, s{sT2}, v{t0}
v_xor_b32 v{vP0+1}, 2048, v{vP0}
v_mov_b32 v{vPI}, v{vP0}
s_lshl_b32 s{sT2}, s{sT}, 6
s_lshl_b32 s{sT3}, s{sT1}, 5
s_add_u32 s{sT2}, s{sT2}, s{sT3}
v_and_b32 v{t0}, 31, v0
v_add_u32 v{t0}, s{sT2}, v{t0}
v_mul_u32_u24 v{t0}, 896, v{t0}
v_lshrrev_b32 v{t1}, 5, v0
s_lshl_b32 s{sT2}, s{sJ}, 7
s_lshl_b32 s{sT3}, s{sT0}, 6
s_add_u32 s{sT2}, s{sT2}, s{sT3}
v_lshl_add_u32 v{t1}, v{t1}, 4, s{sT2}
v_add_u32 v{vXO}, v{t0}, v{t1}
v_mov_b32 v{vXO+1}, v{t1}
""")

def stats_chunk(raw, un, s1, s2, first):
    p = []
    for d in range(4):
        a = s1 + (d & 1); b = s2 + (d & 1)
        c1 = '0' if (first and d < 2) else f'v{a}'
        c2 = '0' if (first and d < 2) else f'v{b}'
        p += I(f"v_dot2_f32_bf16 v{a}, v{raw+d}, s{sOne}, {c1}\nv_dot2_f32_bf16 v{b}, v{raw+d}, v{raw+d}, {c2}")
        if un is not None:
            p += I(f"v_lshlrev_b32 v{un+2*d}, 16, v{raw+d}\nv_and_b32 v{un+2*d+1}, 0xffff0000, v{raw+d}")
    return p

def stats_final(s1, s2, t, double, red, r2out=None):
    p = I(f"v_add_f32 v{s1}, v{s1}, v{s1+1}\nv_add_f32 v{s2}, v{s2}, v{s2+1}")
    p += red(s1, s2, t)
    eps = hex(f2u(1e-5)); inv = hex(f2u(1.0 / 448))
    p += I(f"""
v_mul_f32 v{s1}, {inv}, v{s1}
v_mul_f32 v{s2}, {inv}, v{s2}
v_fma_f32 v{s2}, -v{s1}, v{s1}, v{s2}
v_max_f32 v{s2}, 0, v{s2}
v_add_f32 v{t}, {eps}, v{s2}
v_rsq_f32 v{t}, v{t}
""")
    if double or r2out is not None:
        p += I(f"""
v_mul_f32 v{s2}, v{s2}, v{t}
v_mul_f32 v{s2}, v{s2}, v{t}
v_add_f32 v{s2}, {eps}, v{s2}
v_rsq_f32 v{s2}, v{s2}
""")
        if double: p += I(f"v_mul_f32 v{t}, v{t}, v{s2}")
        else: p += I(f"v_mov_b32 v{r2out}, v{s2}")
    p += I(f"v_mul_f32 v{s2}, v{s1}, v{t}\nv_mov_b32 v{s1}, v{t}\nv_sub_f32 v{s2}, 0, v{s2}")
    return p

def red_g(s1, s2, t):
    p = []
    for sw in ('v_permlane32_swap_b32', 'v_permlane16_swap_b32'):
        p += I(f"""
v_mov_b32 v{t}, v{s1}
v_mov_b32 v{t+1}, v{s2}
{sw} v{s1}, v{t}
{sw} v{s2}, v{t+1}
v_add_f32 v{s1}, v{s1}, v{t}
v_add_f32 v{s2}, v{s2}, v{t+1}
""")
    return p
def red_row(s1, s2, t):
    p = []
    for k in (8, 4, 2, 1):
        p += I(f"v_add_f32_dpp v{s1}, v{s1}, v{s1} row_ror:{k} row_mask:0xf bank_mask:0xf\nv_add_f32_dpp v{s2}, v{s2}, v{s2} row_ror:{k} row_mask:0xf bank_mask:0xf")
    return p

def norm_chunk(un, pk, sc, sh, addr, off):
    p = []
    for e in range(8): p += I(f"v_fma_f32 v{un+e}, v{un+e}, v{sc}, v{sh}")
    for d in range(4): p += I(f"v_cvt_pk_bf16_f32 v{pk+d}, v{un+2*d}, v{un+2*d+1}")
    p += I(f"ds_write_b128 v{addr}, v[{pk}:{pk+3}] offset:{off}")
    return p

def gelu_group(zs, tmp, vA, pre=None):
    p = []
    n = len(zs)
    if pre: p += pre
    p += [Ins(f"v_mul_f32 v{tmp+i}, v{z}, v{z}") for i, z in enumerate(zs)]
    p += [Ins(f"v_fma_f32 v{tmp+i}, v{tmp+i}, s{sGB}, v{vA}") for i in range(n)]
    p += [Ins(f"v_mul_f32 v{tmp+i}, v{tmp+i}, v{z}") for i, z in enumerate(zs)]
    p += [Ins(f"v_exp_f32 v{tmp+i}, v{tmp+i}") for i in range(n)]
    p += [Ins(f"v_add_f32 v{tmp+i}, 1.0, v{tmp+i}") for i in range(n)]
    p += [Ins(f"v_rcp_f32 v{tmp+i}, v{tmp+i}") for i in range(n)]
    p += [Ins(f"v_mul_f32 v{tmp+i}, v{tmp+i}, v{z}") for i, z in enumerate(zs)]
    return p

class Slot:
    def __init__(self, srd, base, off, vpat, m0, ninstr, trs, mfmas, cap):
        self.srd, self.base, self.off, self.vpat, self.m0, self.ninstr = srd, base, off, vpat, m0, ninstr
        self.trs = trs
        self.mfmas = mfmas
        self.cap = cap

def dma_ops(n, s, R):
    setup = I(f"s_add_u32 s{sSO}, s{s.base}, {s.off}\ns_add_u32 m0, s{s.m0}, {(n % R) * 16384}")
    d = [Ins(f"buffer_load_dwordx4 v{s.vpat+j}, s[{s.srd}:{s.srd+3}], s{sSO} offen offset:{j*1024} lds", tag=('slot', n)) for j in range(s.ninstr)]
    return setup, d

def tr(dst, vlo, base, off, acc=False):
    a = base + off
    v = vlo + (a >> 16); a &= 0xffff
    r = 'a' if acc else 'v'
    return Ins(f"ds_read_b64_tr_b16 {r}[{dst}:{dst+1}], v{v} offset:{a}")

def main_loop(slots, R, fill, pre_m, post_m, first_fill=None, span_lim={}, vS=None):
    p = []
    N = len(slots)
    for n in range(N + 1):
        if n < N:
            p.append(Wait(vm=[('slot', n)], lgkm0=True)); p += I("s_barrier")
        else:
            p.append(Wait(lgkm0=True))
        if vS is not None:
            p += I(f"v_writelane_b32 v{vS}, s20, {n}\ns_memtime s[20:21]")
        trs = slots[n].trs((n % R) * 16384) if n < N else []
        nn = n + R - 1
        setup, dm = dma_ops(nn, slots[nn], R) if nn < N else ([], [])
        ms = list(pre_m.get(n, [])) + (slots[n - 1].mfmas if n >= 1 else []) + list(post_m.get(n, []))
        fl = fill.get(n, [])
        if not ms:
            ff = first_fill or []
            p += trs + ff + setup + dm + fl
            continue
        G = len(ms)
        gaps = [[] for _ in range(G)]
        caps = [28.0 if x.passes == 8 else 12.0 for x in ms]
        k = 0; g = 0
        while k < len(trs):
            per = 2 if ms[g].passes == 8 else 1
            if g == G - 1: per = len(trs) - k
            gaps[g] += trs[k:k + per]; k += per; g = min(g + 1, G - 1)
        if dm:
            g0 = min(g, G - 1) if len(trs) <= 8 else G // 2
            span = max(G - 1 - g0, 1)
            gaps[max(g0 - 1, 0)] += setup
            for i, d in enumerate(dm):
                gaps[min(g0 + (i * span) // len(dm), G - 1)].append(d)
        rem = [max(0.01, caps[i] - sum(x.cost for x in gaps[i]) - (8 if i == G - 1 else 0)) for i in range(G)]
        if n in span_lim:
            lo, hi = span_lim[n]
            parts = [[] for _ in range(lo)] + split_cost(fl, rem[lo:hi]) + [[] for _ in range(G - hi)]
        else:
            parts = split_cost(fl, rem)
        for i in range(G):
            p.append(ms[i]); p += gaps[i] + parts[i]
    return p

def spread(fill, ops, it0, it1):
    parts = split_cost(ops, [1] * (it1 - it0 + 1))
    for i, x in enumerate(parts):
        fill[it0 + i] = interleave(fill.get(it0 + i, []), x)

def mf32(d, a, b, c, areg='v', breg='a'):
    cc = f"v[{c}:{c+15}]" if c is not None else "0"
    return Ins(f"v_mfma_f32_32x32x16_bf16 v[{d}:{d+15}], {areg}[{a}:{a+3}], {breg}[{b}:{b+3}], {cc}")
def mf16(d, a, b, c):
    cc = f"v[{c}:{c+3}]" if c is not None else "0"
    return Ins(f"v_mfma_f32_16x16x32_bf16 v[{d}:{d+3}], {a[0]}[{a[1]}:{a[1]+3}], {b[0]}[{b[1]}:{b[1]+3}], {cc}")

AB = [32, 48]
def pair_slot(n, srd_, base, off, vD2, vT2, acc, fr, first):
    ab = AB[n & 1]
    trs = lambda lb: [tr(ab + ks * 4 + h * 2, vT2, lb, ks * 2048 + h * 1024) for ks in range(4) for h in range(2)]
    ms = [mf32(acc + tt * 16, ab + ks * 4, fr + ks * 8 + tt * 4, None if (first and ks == 0) else acc + tt * 16) for ks in range(4) for tt in range(2)]
    return Slot(srd_, base, off, vD2, sM0, 4, trs, ms, 28)
def own_slot(n, srd_, base, off, vD2, vT3, acc, fr, nks):
    ab = 192 + 32 * (n & 1)
    trs = lambda lb: [tr(ab + ks * 4 + h * 2, vT3, lb, ks * 2048 + h * 1024, acc=True) for ks in range(nks) for h in range(2)]
    ms = [mf32(acc, ab + ks * 4, fr + ks * 8, acc, areg='a') for ks in range(nks)]
    return Slot(srd_, base, off, vD2, sM0 if nks == 8 else sM0h, nks // 2, trs, ms, 28)

def frag_reads(vF0, ks0, nks, areg0):
    return [Ins(f"ds_read_b128 a[{areg0 + k*8 + t*4}:{areg0 + k*8 + t*4 + 3}], v{vF0 + t} offset:{(ks0 + k) * 2048}") for k in range(nks) for t in range(2)]

def part_store(acc, pk, vP0, so, ntt=2):
    p = []
    for tt in range(ntt):
        for c in range(2):
            q = pk + ((tt * 2 + c) % 4) * 4
            for d in range(4):
                p += I(f"v_cvt_pk_bf16_f32 v{q+d}, v{acc + tt*16 + c*8 + 2*d}, v{acc + tt*16 + c*8 + 2*d + 1}")
            p.append(Ins(f"buffer_store_dwordx4 v[{q}:{q+3}], v{vP0+tt}, s[{SWS}:{SWS+3}], s{so} offen offset:{c*1024} sc1", tag='part'))
    return p

def own_init_loads(t, vXO):
    p = []
    for c in range(2):
        p += I(f"buffer_load_dwordx4 v[{t+c*4}:{t+c*4+3}], v{vXO}, s[{SX}:{SX+3}], s{sXo} offen offset:{c*32}")
    for c in range(2):
        p += I(f"buffer_load_dwordx4 v[{t+8+c*4}:{t+8+c*4+3}], v{vXO+1}, s[{SB2}:{SB2+3}], s{sXo} offen offset:{c*32}")
    return p
def own_init(t, acc):
    p = []
    for k in range(4):
        b = t + 4 * k
        p += I(f"v_permlane32_swap_b32 v{b}, v{b+2}\nv_permlane32_swap_b32 v{b+1}, v{b+3}")
    for d in range(8):
        p += I(f"v_dot2_f32_bf16 v{acc+2*d}, v{t+d}, s{sLo}, 0\nv_dot2_f32_bf16 v{acc+2*d+1}, v{t+d}, s{sHi}, 0")
    for d in range(8):
        p += I(f"v_dot2_f32_bf16 v{acc+2*d}, v{t+8+d}, s{sLo}, v{acc+2*d}\nv_dot2_f32_bf16 v{acc+2*d+1}, v{t+8+d}, s{sHi}, v{acc+2*d+1}")
    return p

def clear_flag(vz, vtid0):
    return I(f"""
v_mov_b32 v{vz}, 0
v_mov_b32 v{vz+1}, 0
v_mov_b32 v{vz+2}, 0
v_mov_b32 v{vz+3}, 0
s_lshl_b32 s{sT0}, s{sRole}, 4
s_add_u32 s{sT0}, s{sT0}, s{sFl}
""") + I(f"buffer_store_dwordx4 v[{vz}:{vz+3}], v{vtid0}, s[{SWS}:{SWS+3}], s{sT0} offen sc1", tag='clr')
def announce(vone, vtid0):
    return I(f"v_mov_b32 v{vone}, 1\ns_lshl_b32 s{sT0}, s{sT}, 3") + [Wait(vm=['clr'])] + \
           I(f"buffer_atomic_add v{vone}, v{vtid0}, s[{SDBG}:{SDBG+3}], s{sT0} offen sc1")

def tail(c, acc, vPI, vXO, vDbg, ld, t, pre, vP0=None, pk=None, vS=None):
    p = []
    if vP0 is not None:
        p += I(f"s_cmp_lg_u32 s{sRole}, 7\ns_cbranch_scc1 {pre}_own\ns_nop 7\ns_nop 3")
        p += part_store(acc, pk, vP0, sPown, ntt=1)
        p += I(f"{pre}_own:")
    if c.stamps: p += I("s_memrealtime s[12:13]")
    p += I(f"""
v_cmp_eq_u32 vcc, 0, v0
v_mov_b32 v{t}, {OOB}
v_mov_b32 v{t+1}, 1
s_lshl_b32 s{sT0}, s{sRole}, 4
s_lshl_b32 s{sT1}, s{sW}, 2
v_cndmask_b32 v{t}, v{t}, v0, vcc
s_add_u32 s{sT0}, s{sT0}, s{sT1}
s_add_u32 s{sT0}, s{sT0}, s{sFl}
s_waitcnt vmcnt(0)
buffer_store_dword v{t+1}, v{t}, s[{SWS}:{SWS+3}], s{sT0} offen sc1
""")
    if vP0 is not None:
        p += I(f"s_cmp_eq_u32 s{sRole}, 7\ns_cbranch_scc1 {pre}_fin")
    p += I(f"""
v_and_b32 v{t+2}, 31, v0
v_lshlrev_b32 v{t+2}, 2, v{t+2}
s_mov_b32 s{sCnt}, 0x10000
v_mov_b32 v{t+3}, 0
s_lshl_b32 s{sT1}, s{sT}, 3
{pre}_dbg:
v_readfirstlane_b32 s{sT0}, v{vDbg}
s_sub_u32 s{sCnt}, s{sCnt}, 1
s_cselect_b32 s{sT0}, 8, s{sT0}
s_cmp_ge_u32 s{sT0}, 8
s_cbranch_scc1 {pre}_poll0
buffer_load_dword v{vDbg}, v{t+3}, s[{SDBG}:{SDBG+3}], s{sT1} offen sc1
s_waitcnt vmcnt(0)
s_branch {pre}_dbg
{pre}_poll0:
s_mov_b32 s{sCnt}, 0x10000
{pre}_poll:
buffer_load_dword v{t+1}, v{t+2}, s[{SWS}:{SWS+3}], s{sFl} offen sc1
s_sub_u32 s{sCnt}, s{sCnt}, 1
s_cbranch_scc1 {pre}_go
s_waitcnt vmcnt(0)
v_cmp_ne_u32 vcc, 1, v{t+1}
s_nop 4
s_cbranch_vccnz {pre}_poll
{pre}_go:
""")
    if c.stamps: p += I("s_memrealtime s[14:15]")
    for k in range(7):
        p += I(f"s_add_u32 s{sT0}, s{sRole}, {k+1}\ns_and_b32 s{sT0}, s{sT0}, 7\ns_lshl_b32 s{sT0}, s{sT0}, 13\ns_add_u32 s{sT0}, s{sT0}, s{sIn}")
        for cc in range(2):
            r = ld + k * 8 + cc * 4
            p += I(f"buffer_load_dwordx4 v[{r}:{r+3}], v{vPI}, s[{SWS}:{SWS+3}], s{sT0} offen offset:{cc*1024} sc1")
    for k in range(7):
        for d in range(8):
            p += I(f"v_dot2_f32_bf16 v{acc+2*d}, v{ld+k*8+d}, s{sLo}, v{acc+2*d}\nv_dot2_f32_bf16 v{acc+2*d+1}, v{ld+k*8+d}, s{sHi}, v{acc+2*d+1}")
    for d in range(8):
        p += I(f"v_cvt_pk_bf16_f32 v{ld+d}, v{acc+2*d}, v{acc+2*d+1}")
    for cc in range(2):
        b = ld + 4 * cc
        p += I(f"v_permlane32_swap_b32 v{b}, v{b+2}\nv_permlane32_swap_b32 v{b+1}, v{b+3}")
    for cc in range(2):
        p += I(f"buffer_store_dwordx4 v[{ld+4*cc}:{ld+4*cc+3}], v{vXO}, s[{SOUT}:{SOUT+3}], 0 offen offset:{cc*32} {c.osc}")
    p += I(f"{pre}_fin:")
    if c.stamps:
        p += I(f"""
s_waitcnt vmcnt(0)
s_memrealtime s[16:17]
s_memtime s[18:19]
s_waitcnt lgkmcnt(0)
s_sub_u32 s18, s18, s20
v_mov_b32 v{ld}, s100
v_mov_b32 v{ld+1}, s10
v_mov_b32 v{ld+2}, s12
v_mov_b32 v{ld+3}, s14
v_mov_b32 v{ld+4}, s16
v_mov_b32 v{ld+5}, s18
v_mov_b32 v{ld+6}, s{sRole}
v_mov_b32 v{ld+7}, s{sT}
s_lshl_b32 s{sT0}, s2, 7
s_lshl_b32 s{sT1}, s{sW}, 5
s_add_u32 s{sT0}, s{sT0}, s{sT1}
s_add_u32 s{sT0}, s{sT0}, {STAMP}
buffer_store_dwordx4 v[{ld}:{ld+3}], v{t}, s[{SWS}:{SWS+3}], s{sT0} offen
buffer_store_dwordx4 v[{ld+4}:{ld+7}], v{t}, s[{SWS}:{SWS+3}], s{sT0} offen offset:16
""")
    if c.it:
        p += I(f"""
s_lshl_b32 s{sT0}, s2, 10
s_lshl_b32 s{sT1}, s{sW}, 8
s_add_u32 s{sT0}, s{sT0}, s{sT1}
s_add_u32 s{sT0}, s{sT0}, {STAMP2}
v_writelane_b32 v{vS}, s20, 63
v_lshlrev_b32 v{t}, 2, v0
buffer_store_dword v{vS}, v{t}, s[{SWS}:{SWS+3}], s{sT0} offen
""")
    p += I("s_endpgm")
    return p

def stamp_main(c):
    return I("s_memrealtime s[10:11]\ns_memtime s[20:21]") if c.stamps else []

def mlp(c):
    R = c.RM
    XH = R * 16384; BT = XH + 57344
    vD1, vD2, vT1, vT2, vT3 = 8, 12, 16, 18, 20
    vHW, vXF, vF0, vBA, vP0, vPI, vGA = 22, 23, 24, 26, 27, 29, 30
    vXO = 176; vDbg = 178; vXW = 179; vSC, vSH = 180, 182
    accA, accB, accC, bias, GT, PK = 64, 96, 128, 160, 184, 192
    RAW = 32
    UN = [96 + 8 * i for i in range(8)] + [208 + 8 * i for i in range(6)]
    p = I("s_waitcnt lgkmcnt(0)") + build_srds()
    for i in range(14):
        p += I(f"buffer_load_dwordx4 v[{RAW+4*i}:{RAW+4*i+3}], v6, s[{SX}:{SX+3}], 0 offen offset:{i*64}")
    p += build_srds2() + consts()
    slots = []
    for r in range(3):
        acc = [accA, accB, accA][r]
        for s in range(7):
            n = len(slots); ab = AB[n & 1]
            trs = lambda lb, ab=ab: [tr(ab + ks * 4 + h * 2, vT1, lb, ks * 2048 + h * 512) for ks in range(4) for h in range(2)]
            ms = [mf32(acc + tt * 16, ab + ks * 4, s * 32 + ks * 8 + tt * 4, bias if (s == 0 and ks == 0) else acc + tt * 16) for ks in range(4) for tt in range(2)]
            slots.append(Slot(SW1, sA0, s * 64 * 3584 + r * 256, vD1, sM0, 4, trs, ms, 28))
    order = [(0, k) for k in range(4)] + [(1, k) for k in range(4)] + [(0, 4), (0, 5), (1, 4), (1, 5)] + [(2, k) for k in range(6)]
    for r, kb in order:
        slots.append(pair_slot(len(slots), SW2, sR[r], kb * 64 * 896, vD2, vT2, [accB, accC, accA][r], kb * 32, kb == 0))
    for u in range(3):
        slots.append(own_slot(len(slots), SW2, sOwn, u * 128 * 896, vD2, vT3, accB, u * 64, 8))
    p += dma_pat8(vD1, 3584, 1, 2)
    p += I(f"""
s_mul_i32 s{sT0}, s{sRole}, 6
s_lshr_b32 s{sT1}, s{sW}, 1
s_add_u32 s{sT0}, s{sT0}, s{sT1}
s_lshl_b32 s{sT0}, s{sT0}, 7
s_and_b32 s{sT1}, s{sW}, 1
s_mul_i32 s{sT1}, s{sT1}, {32*3584}
s_add_u32 s{sA0}, s{sT0}, s{sT1}
""")
    p += I(f"""
s_mul_i32 s{sT0}, s{sRole}, 768
s_lshl_b32 s{sT1}, s{sW}, 8
s_add_u32 s{sT0}, s{sT0}, s{sT1}
v_lshlrev_b32 v1, 2, v0
s_cmp_lt_u32 s{sW}, 3
s_cselect_b32 s{sT0}, s{sT0}, {OOB}
buffer_load_dword v5, v1, s[{SB1}:{SB1+3}], s{sT0} offen
""")
    for n in range(R - 1):
        su, d = dma_ops(n, slots[n], R); p += su + d
    p += clear_flag(PK, 7)
    p += dma_pat8(vD2, 896, 1, 2)
    p += I(f"s_mul_i32 s{sCnt}, s{sRole}, 384")
    p += round_scalars(sCnt, False)
    p += g2_addrs(vT2, vT3, vF0, vP0, vPI, vXO, XH, 1, 2, 3)
    p += I(f"""
v_lshrrev_b32 v1, 5, v0
v_lshl_add_u32 v{vT1}, v1, 9, v{vT2}
v_add_u32 v{vT1+1}, 0x10000, v{vT1}
v_lshlrev_b32 v2, 4, v0
v_add_u32 v{vXF}, {XH}, v2
v_add_u32 v{vHW}, s{sM0}, v{vXF}
s_lshl_b32 s{sT0}, s{sW}, 7
s_add_u32 s{sT0}, s{sT0}, {BT}
v_lshl_add_u32 v{vBA}, v1, 4, s{sT0}
v_mov_b32 v{vGA}, {hex(f2u(GA))}
v_and_b32 v1, 15, v0
v_bfe_u32 v2, v0, 4, 1
v_lshl_add_u32 v1, v2, 5, v1
v_lshlrev_b32 v1, 4, v1
v_lshrrev_b32 v2, 5, v0
v_lshl_add_u32 v1, v2, 11, v1
s_lshr_b32 s{sT0}, s{sW}, 1
s_lshl_b32 s{sT0}, s{sT0}, 10
s_and_b32 s{sT1}, s{sW}, 1
s_lshl_b32 s{sT1}, s{sT1}, 8
s_add_u32 s{sT0}, s{sT0}, s{sT1}
s_add_u32 s{sT0}, s{sT0}, {XH}
v_add_u32 v{vXW}, s{sT0}, v1
""")
    for i in range(14): p += stats_chunk(RAW + 4 * i, UN[i], vSC, vSH, i == 0)
    p += stats_final(vSC, vSH, 1, True, red_g)
    nrm = [norm_chunk(UN[i], PK + 4 * (i % 4), vSC, vSH, vXW, i * 4096) for i in range(14)]
    fill = {}
    bt = I(f"""
v_lshlrev_b32 v2, 16, v5
v_and_b32 v3, 0xffff0000, v5
s_lshl_b32 s{sT0}, s{sW}, 9
s_add_u32 s{sT0}, s{sT0}, {BT}
v_lshl_add_u32 v1, v0, 3, s{sT0}
ds_write_b64 v1, v[2:3]
""")
    p += bt
    if c.prog:
        p += interleave(nrm[0], nrm[1])
        for s in range(1, 7): fill[s - 1] = interleave(nrm[2 * s], nrm[2 * s + 1])
    else:
        for i in range(0, 14, 2): p += interleave(nrm[i], nrm[i + 1])
    p += stamp_main(c)
    xfr = lambda s: [Ins(f"ds_read_b128 a[{s*32+k*4}:{s*32+k*4+3}], v{vXF} offset:{s*8192+k*1024}") for k in range(8)]
    biasr = lambda r: [Ins(f"ds_read_b128 v[{bias+4*q}:{bias+4*q+3}], v{vBA} offset:{r*512+q*32}") for q in range(4)]
    ff = xfr(0) + biasr(0)
    for s in range(1, 7): fill[s] = interleave(xfr(s), fill.get(s, []))
    spread(fill, biasr(1), 6, 6); spread(fill, biasr(2), 13, 13)
    spread(fill, announce(4, 7), 6, 6)
    def gelu_round(r, acc):
        ops = []
        k = 0
        for tt in range(2):
            for cc in range(2):
                pk = PK + 4 * (k % 4)
                for hh in range(2):
                    zs = [acc + tt * 16 + cc * 8 + hh * 4 + i for i in range(4)]
                    tmp = GT + 4 * (hh)
                    ops += gelu_group(zs, tmp, vGA)
                    ops += I(f"v_cvt_pk_bf16_f32 v{pk+2*hh}, v{tmp}, v{tmp+1}\nv_cvt_pk_bf16_f32 v{pk+2*hh+1}, v{tmp+2}, v{tmp+3}")
                ops += I(f"ds_write_b128 v{vHW}, v[{pk}:{pk+3}] offset:{r*16384 + cc*2048 + tt*1024}")
                k += 1
        return ops
    spread(fill, gelu_round(0, accA), 8, 14)
    spread(fill, gelu_round(1, accB), 15, 21)
    spread(fill, gelu_round(2, accA), 22, 28)
    for b, it in enumerate([17, 19, 22, 23, 29, 30]):
        spread(fill, frag_reads(vF0, 4 * b, 4, 32 * b), it, it + (1 if b < 2 else 0))
    spread(fill, part_store(accB, PK, vP0, sPo[0]), 32, 33)
    spread(fill, part_store(accC, PK, vP0, sPo[1]), 34, 35)
    XI = 208
    spread(fill, own_init_loads(XI, vXO) + I(f"v_mov_b32 v4, 0\ns_lshl_b32 s{sT0}, s{sT}, 3\nbuffer_load_dword v{vDbg}, v4, s[{SDBG}:{SDBG+3}], s{sT0} offen sc1"), 31, 31)
    spread(fill, own_init(XI, accB), 37, 39)
    fill[40] = part_store(accA, PK, vP0, sPo[2])
    p += main_loop(slots, R, fill, {}, {}, ff, vS=31 if c.it else None)
    p += I("s_nop 7\ns_nop 3")
    p += tail(c, accB, vPI, vXO, vDbg, 32, 1, "Lm", vS=31)
    return p

def attn(c):
    R = c.RA
    XS = R * 16384; RT = XS + 71680
    vDH, vD2, vDQ = 8, 12, 16
    vTH, vTQ0, vTQ1, vT2, vT3 = 20, 22, 24, 26, 28
    vXF, vOW = 30, 31
    vF0, vP0, vPI, vXO = 64, 66, 68, 252
    vGA, vPM, vM, vCs, vCp, vC0, vR2, vBi = 70, 71, 72, 76, 80, 84, 88, 92
    vDbg = 69; vXF2 = 254
    HF = 96
    X, Y, accH, Qp, Kp = 120, 160, 200, 216, 232
    RAWm = [32 + 4 * i for i in range(8)] + [96 + 4 * i for i in range(6)]
    UN = [120 + 8 * i for i in range(10)] + [216 + 8 * i for i in range(4)]
    RAWh = 72
    vSC, vSH, vSC2, vSH2 = 88, 90, 92, 94
    sA0h = 31
    xf = lambda ks, tau: (('a', (ks * 4 + tau - 1) * 4) if tau >= 1 else (('a', 224 + ks * 4) if ks < 8 else ('v', HF + (ks - 8) * 4)))
    p = I("Lattn:\ns_waitcnt lgkmcnt(0)") + build_srds()
    for i in range(14):
        p += I(f"buffer_load_dwordx4 v[{RAWm[i]}:{RAWm[i]+3}], v6, s[{SX}:{SX+3}], 0 offen offset:{i*64}")
    p += I(f"""
s_lshl_b32 s{sT0}, s{sT}, 6
s_lshl_b32 s{sT1}, s{sW}, 2
s_add_u32 s{sT0}, s{sT0}, s{sT1}
s_sub_u32 s{sT0}, s{sT0}, 16
v_lshrrev_b32 v1, 4, v0
v_add_u32 v1, s{sT0}, v1
v_mul_u32_u24 v1, 896, v1
v_and_b32 v2, 15, v0
v_lshl_add_u32 v1, v2, 4, v1
v_cmp_gt_u32 vcc, 8, v2
v_mov_b32 v3, {OOB}
s_cmp_eq_u32 s{sT}, 0
s_cselect_b32 s{sT1}, {OOB}, 0
v_and_b32 v1, 0x3fffffff, v1
v_cndmask_b32 v3, v3, v1, vcc
""")
    for j in range(4):
        p += I(f"buffer_load_dwordx4 v[{RAWh+4*j}:{RAWh+4*j+3}], v{3 if j == 3 else 1}, s[{SX}:{SX+3}], s{sT1} offen offset:{j*256}")
    p += build_srds2() + consts()
    slots = []
    for u in range(4):
        n = len(slots); ab = AB[n & 1]; nks = 4 if u < 3 else 2
        trs = lambda lb, ab=ab, nks=nks: [tr(ab + ks * 4 + h * 2, vTH, lb, ks * 4096 + h * 512) for ks in range(nks) for h in range(2)]
        ms = [mf16(accH + tt * 4, ('v', ab + ks * 4), xf(4 * u + ks, tt + 1), None if (u == 0 and ks == 0) else accH + tt * 4) for ks in range(nks) for tt in range(4)]
        slots.append(Slot(SW1, sA0 if u < 3 else sA0h, u * 128 * 3584, vDH, sM0 if u < 3 else sM0h, nks, trs, ms, 12))
    for sec, acc in ((0, X), (1, Y), (2, X)):
        for s in range(7):
            n = len(slots); ab = AB[n & 1]
            trs = lambda lb, ab=ab: [tr(ab + ks * 8 + hf * 4 + h * 2, vTQ1 if hf else vTQ0, lb, ks * 8192 + h * 1024) for ks in range(2) for hf in range(2) for h in range(2)]
            ms = []
            taus = range(1, 5) if sec == 0 else range(5)
            for ks in range(2):
                for hf in range(2):
                    for tau in taus:
                        d = acc + (hf * 4 + tau - 1) * 4 if sec == 0 else acc + (hf * 5 + tau) * 4
                        a_ = ('v', ab + ks * 8 + hf * 4); b_ = xf(2 * s + ks, tau)
                        if sec == 2: a_, b_ = b_, a_
                        ms.append(mf16(d, a_, b_, None if (s == 0 and ks == 0) else d))
            slots.append(Slot(SQKV, sQ, s * 64 * 2688 + sec * 896, vDQ, sM0, 4, trs, ms, 12))
    racc = [Y, 80, X]
    for r in range(3): slots.append(pair_slot(len(slots), SW2, sR[r], 0, vD2, vT2, racc[r], 0, True))
    for r in range(3):
        for k in range(2): slots.append(pair_slot(len(slots), SWO, sRo[r], k * 56 * 896, vD2, vT2, racc[r], 32 + 32 * k, False))
    slots.append(own_slot(len(slots), SW2, sOwn, 0, vD2, vT3, accH, 0, 4))
    slots.append(own_slot(len(slots), SWO, sOwnO, 0, vD2, vT3, accH, 32, 8))
    assert len(slots) == 36
    p += dma_pat8(vDH, 3584, 1, 2, bit3=True)
    p += I(f"""
s_add_u32 s{sT0}, s{sRole}, 20
s_lshl_b32 s{sT0}, s{sT0}, 7
s_mul_i32 s{sT1}, s{sW}, {32*3584}
s_add_u32 s{sA0}, s{sT0}, s{sT1}
s_mul_i32 s{sT1}, s{sW}, {16*3584}
s_add_u32 s{sA0h}, s{sT0}, s{sT1}
""")
    assert R - 1 <= 4
    p += I(f"""
s_lshl_b32 s{sT1}, s{sW}, 5
s_add_u32 s{sT0}, s{sT0}, s{sT1}
v_lshrrev_b32 v1, 4, v0
v_lshlrev_b32 v1, 3, v1
buffer_load_dwordx2 v[4:5], v1, s[{SB1}:{SB1+3}], s{sT0} offen
""")
    for n in range(R - 1):
        su, d = dma_ops(n, slots[n], R); p += su + d
    p += clear_flag(248, 7)
    p += dma_pat8(vD2, 896, 1, 2)
    p += I(f"s_add_u32 s{sCnt}, s{sRole}, 20\ns_lshl_b32 s{sCnt}, s{sCnt}, 6")
    p += round_scalars(sCnt, True)
    p += g2_addrs(vT2, vT3, vF0, vP0, vPI, vXO, XS, 1, 2, 3)
    p += I(f"""
v_lshrrev_b32 v1, 4, v0
v_and_b32 v2, 15, v0
v_lshlrev_b32 v3, 1, v1
v_xor_b32 v2, v2, v3
v_mul_u32_u24 v1, 2688, v1
v_lshl_add_u32 v{vDQ}, v2, 4, v1
v_add_u32 v{vDQ+1}, {4*2688-1024}, v{vDQ}
v_xor_b32 v2, 8, v2
v_lshl_add_u32 v3, v2, 4, v1
v_add_u32 v{vDQ+2}, {2*(4*2688-1024)}, v3
v_add_u32 v{vDQ+3}, {3*(4*2688-1024)}, v3
s_sub_u32 s{sT0}, s{sRole}, 4
s_mul_i32 s{sT0}, s{sT0}, 224
s_cmp_eq_u32 s{sRole}, 7
s_cselect_b32 s{sT1}, 32, 0
s_sub_u32 s{sT0}, s{sT0}, s{sT1}
s_mul_i32 s{sT2}, s{sW}, {16*2688}
s_add_u32 s{sQ}, s{sT0}, s{sT2}
s_mul_i32 s{sT2}, s{sW}, 56
s_add_u32 s{sT1}, s{sT1}, s{sT2}
v_bfe_u32 v1, v0, 2, 2
v_lshrrev_b32 v2, 4, v0
v_lshl_add_u32 v3, v2, 3, v1
v_and_b32 v2, 1, v2
v_lshl_add_u32 v1, v2, 2, v1
v_lshlrev_b32 v1, 5, v1
v_and_b32 v2, 3, v0
v_lshl_add_u32 v2, v2, 3, s{sT1}
v_xor_b32 v{vTQ0}, v2, v1
v_add_u32 v2, 32, v2
v_xor_b32 v{vTQ1}, v2, v1
v_lshl_add_u32 v{vTQ0}, v3, 8, v{vTQ0}
v_lshl_add_u32 v{vTQ1}, v3, 8, v{vTQ1}
v_add_u32 v{vTQ0+1}, 0x10000, v{vTQ0}
v_add_u32 v{vTQ1+1}, 0x10000, v{vTQ1}
v_bfe_u32 v1, v0, 3, 1
v_bfe_u32 v2, v0, 4, 1
v_lshl_add_u32 v1, v1, 1, v2
v_xor_b32 v1, s{sW}, v1
v_lshlrev_b32 v1, 5, v1
v_and_b32 v2, 3, v0
v_lshl_add_u32 v1, v2, 3, v1
v_lshl_add_u32 v{vTH}, v3, 7, v1
v_add_u32 v{vTH+1}, 0x10000, v{vTH}
v_lshlrev_b32 v2, 4, v0
v_add_u32 v{vXF}, {XS}, v2
v_add_u32 v{vXF2}, {XS + 7*5120}, v2
v_and_b32 v1, 15, v0
v_bfe_u32 v2, v0, 4, 1
v_lshl_add_u32 v1, v2, 5, v1
v_lshlrev_b32 v1, 4, v1
v_lshrrev_b32 v2, 5, v0
v_lshl_add_u32 v1, v2, 3, v1
v_add_u32 v{vOW}, {XS}, v1
v_mov_b32 v{vGA}, {hex(f2u(GA))}
""")
    for i in range(14): p += stats_chunk(RAWm[i], UN[i], vSC, vSH, i == 0)
    for j in range(4): p += stats_chunk(RAWh + 4 * j, None, vSC2, vSH2, j == 0)
    p += interleave(stats_final(vSC, vSH, 1, False, red_g, r2out=6), stats_final(vSC2, vSH2, 248, False, red_row))
    vXW, vXWb, vXH = 249, 250, 251
    p += I(f"""
s_add_u32 s{sT0}, s{sW}, 1
s_lshl_b32 s{sT0}, s{sT0}, 10
v_add_u32 v{vXW}, s{sT0}, v{vXF}
v_add_u32 v{vXWb}, s{sT0}, v{vXF2}
v_and_b32 v1, 15, v0
s_lshl_b32 s{sT0}, s{sW}, 2
s_add_u32 s{sT0}, s{sT0}, {RT}
v_lshl_add_u32 v1, v1, 4, s{sT0}
ds_write_b32 v1, v6
v_bfe_u32 v1, v0, 2, 2
v_mul_u32_u24 v1, 5120, v1
v_and_b32 v2, 3, v0
v_lshrrev_b32 v3, 4, v0
v_lshl_add_u32 v2, v2, 4, v3
s_lshl_b32 s{sT0}, s{sW}, 6
s_add_u32 s{sT0}, s{sT0}, {XS}
v_lshl_add_u32 v2, v2, 4, s{sT0}
v_add_u32 v{vXH}, v1, v2
""")
    PKA = [32, 36, 40, 44]
    def nrm(i, pk): return norm_chunk(UN[i], pk, vSC, vSH, vXW if i < 7 else vXWb, (i % 7) * 5120)
    def nrm_h(j, un, pk):
        q = []
        for d in range(4): q += I(f"v_lshlrev_b32 v{un+2*d}, 16, v{RAWh+4*j+d}\nv_and_b32 v{un+2*d+1}, 0xffff0000, v{RAWh+4*j+d}")
        q += norm_chunk(un, pk, vSC2, vSH2, vXH, j * 4 * 5120)
        return q
    fill = {}
    for i in range(0, 14, 2): p += interleave(nrm(i, PKA[i % 4]), nrm(i + 1, PKA[(i + 1) % 4]))
    for j in range(3): p += nrm_h(j, 120 + 8 * j, PKA[j])
    q = nrm_h(3, 144, PKA[3]); wr = q.pop()
    p += q + I("v_and_b32 v1, 15, v0\nv_cmp_gt_u32 vcc, 8, v1\ns_nop 4\ns_and_saveexec_b64 s[22:23], vcc") + [wr] + I("s_mov_b64 exec, s[22:23]")
    p += I(f"""
v_lshlrev_b32 v{vBi}, 16, v4
v_and_b32 v{vBi+1}, 0xffff0000, v4
v_lshlrev_b32 v{vBi+2}, 16, v5
v_and_b32 v{vBi+3}, 0xffff0000, v5
""")
    p += stamp_main(c)
    def xfr(ks, tau):
        r = xf(ks, tau)
        return Ins(f"ds_read_b128 {r[0]}[{r[1]}:{r[1]+3}], v{vXF if ks < 7 else vXF2} offset:{(ks % 7) * 5120 + tau * 1024}")
    ff = [xfr(ks, t) for ks in range(4) for t in range(1, 5)]
    for u in range(1, 4): fill[u] = [xfr(ks, t) for ks in range(4 * u, min(4 * u + 4, 14)) for t in range(1, 5)]
    spread(fill, I(f"v_and_b32 v1, 15, v0\nv_lshlrev_b32 v1, 4, v1\nv_add_u32 v1, {RT}, v1\nds_read_b128 v[{vR2}:{vR2+3}], v1"), 3, 3)
    spread(fill, [xfr(ks, 0) for ks in range(14)], 4, 6)
    spread(fill, announce(4, 7), 5, 5)
    mk = I(f"""
v_and_b32 v1, 15, v0
v_lshrrev_b32 v2, 4, v0
v_cmp_eq_u32 vcc, 3, v2
v_lshlrev_b32 v2, 2, v2
v_and_b32 v3, 1, v0
v_cndmask_b32_e64 v{vPM}, -1, 0, vcc
v_cmp_eq_u32 vcc, 1, v3
v_add_u32 v2, v2, v3
v_mov_b32 v5, 0xffff
v_mov_b32 v6, 0xffff0000
v_cndmask_b32 v5, v5, v6, vcc
v_cmp_le_u32 vcc, v2, v1
v_add_u32 v2, 2, v2
v_mov_b32 v6, {hex(NEG)}
v_cndmask_b32 v{vM+2}, 0, v5, vcc
v_cmp_le_u32 vcc, v2, v1
v_xor_b32 v{vM}, v5, v{vM+2}
v_cndmask_b32 v{vM+3}, 0, v5, vcc
v_xor_b32 v{vM+1}, v5, v{vM+3}
""")
    mk += G(f"s_cmp_eq_u32 s{sT}, 0\ns_cselect_b32 s{sT1}, 0, -1")
    for base, mo in ((vCp, 0), (vCs, 2)):
        for r in range(4):
            mk += I(f"v_and_b32 v1, {'0xffff' if r % 2 == 0 else '0xffff0000'}, v{vM + mo + r // 2}\nv_cmp_ne_u32 vcc, 0, v1\nv_cndmask_b32_e64 v{base + r}, v6, 0, vcc")
    mk += I(f"v_mov_b32 v1, s{sT1}\nv_cmp_ne_u32 vcc, 0, v1")
    for r in range(4): mk += I(f"v_cndmask_b32 v{vC0+r}, v6, v{vCp+r}, vcc")
    spread(fill, mk, 7, 8)
    g = []
    for tt in range(4):
        zs = [accH + tt * 4 + i for i in range(4)]
        tmp = Kp + 4 * (tt & 1); pk = Kp + 8 + 2 * (tt & 1)
        pre = [Ins(f"v_fma_f32 v{z}, v{z}, v{vR2+tt}, v{vBi+i}") for i, z in enumerate(zs)]
        g += gelu_group(zs, tmp, vGA, pre)
        g += I(f"v_cvt_pk_bf16_f32 v{pk}, v{tmp}, v{tmp+1}\nv_cvt_pk_bf16_f32 v{pk+1}, v{tmp+2}, v{tmp+3}")
        g += I(f"ds_write_b64 v{vOW+0}, v[{pk}:{pk+1}] offset:{(tt >> 1) * 1024 + (tt & 1) * 256}".replace(f"v{vOW+0},", "v3,"))
    g = I(f"s_add_u32 s{sT2}, s{sM0h}, {8*2048}\nv_add_u32 v3, s{sT2}, v{vOW}") + g
    spread(fill, g, 9, 17)
    def pack(src, dst, ntile, stride):
        q = []
        for t in range(ntile):
            for hf in range(2):
                a = src + (hf * stride + t) * 4; d = dst + t * 4 + hf * 2
                q += I(f"v_cvt_pk_bf16_f32 v{d}, v{a}, v{a+1}\nv_cvt_pk_bf16_f32 v{d+1}, v{a+2}, v{a+3}")
            q += I(f"v_and_b32 v{dst+t*4+2}, v{vPM}, v{dst+t*4+2}\nv_and_b32 v{dst+t*4+3}, v{vPM}, v{dst+t*4+3}")
        return q
    spread(fill, pack(X, Qp, 4, 4), 12, 13)
    spread(fill, pack(Y, Kp, 5, 5), 19, 19)
    pre_m = {}; post_m = {}
    S = Y
    pre_m[20] = []
    for tt in range(4):
        pre_m[20].append(mf16(S + tt * 8, ('v', Kp + tt * 4), ('v', Qp + tt * 4), vC0 if tt == 0 else vCp))
        pre_m[20].append(mf16(S + tt * 8 + 4, ('v', Kp + tt * 4 + 4), ('v', Qp + tt * 4), vCs))
    P = accH; TT = Qp
    def rep(fmt): return [Ins(fmt.format(s=S + 8 * t, s1=S + 8 * t + 1, s2=S + 8 * t + 2, s3=S + 8 * t + 3, s4=S + 8 * t + 4, s5=S + 8 * t + 5, s6=S + 8 * t + 6, s7=S + 8 * t + 7,
                                         a=TT + 4 * t, b=TT + 4 * t + 1, m=TT + 4 * t + 2, u=TT + 4 * t + 3, p=P + 4 * t, p1=P + 4 * t + 1, p2=P + 4 * t + 2, p3=P + 4 * t + 3)) for t in range(4)]
    sm = []
    sm += rep("v_max3_f32 v{a}, v{s}, v{s1}, v{s4}") + rep("v_max3_f32 v{b}, v{s2}, v{s3}, v{s6}")
    sm += rep("v_max_f32 v{a}, v{a}, v{s5}") + rep("v_max_f32 v{b}, v{b}, v{s7}")
    sm += rep("v_max_f32 v{m}, v{a}, v{b}")
    for sw in ('v_permlane32_swap_b32', 'v_permlane16_swap_b32'):
        sm += rep("v_mov_b32 v{u}, v{m}") + rep(sw + " v{m}, v{u}") + rep("v_max_f32 v{m}, v{m}, v{u}")
    sm += rep("v_sub_f32 v{a}, v{a}, v{m}") + rep("v_sub_f32 v{b}, v{b}, v{m}")
    sm += rep(f"v_mul_f32 v{{a}}, s{sSc}, v{{a}}") + rep(f"v_mul_f32 v{{b}}, s{sSc}, v{{b}}")
    sm += rep("v_exp_f32 v{a}, v{a}") + rep("v_exp_f32 v{b}, v{b}")
    sm += rep("v_add_f32 v{m}, v{a}, v{b}")
    for sw in ('v_permlane32_swap_b32', 'v_permlane16_swap_b32'):
        sm += rep("v_mov_b32 v{u}, v{m}") + rep(sw + " v{m}, v{u}") + rep("v_add_f32 v{m}, v{m}, v{u}")
    sm += rep("v_rcp_f32 v{m}, v{m}")
    sm += rep("v_mul_f32 v{a}, v{a}, v{m}") + rep("v_mul_f32 v{b}, v{b}, v{m}")
    sm += rep("v_cvt_pk_bf16_f32 v{a}, v{a}, v{a}") + rep("v_cvt_pk_bf16_f32 v{b}, v{b}, v{b}")
    sm += rep(f"v_and_b32 v{{p}}, v{vM}, v{{a}}") + rep(f"v_and_b32 v{{p1}}, v{vM+1}, v{{b}}")
    sm += rep(f"v_and_b32 v{{p2}}, v{vM+2}, v{{a}}") + rep(f"v_and_b32 v{{p3}}, v{vM+3}, v{{b}}")
    spread(fill, sm, 21, 25)
    spread(fill, frag_reads(vF0, 8, 4, 0), 22, 23)
    Vp = Kp
    vp = []
    for hf in range(2):
        for tau in range(5):
            a = X + (hf * 5 + tau) * 4; d = Vp + hf * 10 + tau * 2
            vp += I(f"v_cvt_pk_bf16_f32 v{d}, v{a}, v{a+1}\nv_cvt_pk_bf16_f32 v{d+1}, v{a+2}, v{a+3}")
    fill[26] = vp
    post_m[26] = [mf16(X + (hf * 4 + tt) * 4, ('v', Vp + hf * 10 + 2 * tt), ('v', P + 4 * tt), None) for hf in range(2) for tt in range(4)]
    op = I(f"v_add_u32 v3, s{sM0}, v{vOW}")
    for hf in range(2):
        for tt in range(4):
            a = X + (hf * 4 + tt) * 4; d = Qp + (hf * 4 + tt) * 2
            op += I(f"v_cvt_pk_bf16_f32 v{d}, v{a}, v{a+1}\nv_cvt_pk_bf16_f32 v{d+1}, v{a+2}, v{a+3}")
            if hf: op += I(f"v_and_b32 v{d}, v{vPM}, v{d}\nv_and_b32 v{d+1}, v{vPM}, v{d+1}")
            op += I(f"ds_write_b64 v3, v[{d}:{d+1}] offset:{hf * 2048 + (tt >> 1) * 1024 + (tt & 1) * 256}")
    fill[27] = op
    fill[28] = frag_reads(vF0, 0, 8, 32)
    XI = Qp
    spread(fill, own_init_loads(XI, vXO) + I(f"v_mov_b32 v4, 0\ns_lshl_b32 s{sT0}, s{sT}, 3\nbuffer_load_dword v{vDbg}, v4, s[{SDBG}:{SDBG+3}], s{sT0} offen sc1"), 29, 29)
    spread(fill, part_store(racc[0], Kp, vP0, sPo[0]), 31, 32)
    spread(fill, own_init(XI, accH), 32, 34)
    spread(fill, part_store(racc[1], Kp, vP0, sPo[1]), 33, 34)
    fill[35] = part_store(racc[2], Kp, vP0, sPo[2])
    p += main_loop(slots, R, fill, pre_m, post_m, ff, span_lim={26: (0, 8)}, vS=255 if c.it else None)
    p += I("s_nop 7\ns_nop 3")
    p += tail(c, accH, vPI, vXO, vDbg, 80, 1, "La", vP0=vP0, pk=Kp, vS=255)
    return p

def finish(p):
    p = resolve_waits(flatten(p))
    p, n = pad_hazards(p)
    return p, n

def gen(path, c):
    cm = common(c)
    pm, n1 = finish(cm + mlp(c))
    pa, n2 = finish(cm + attn(c))
    k = next(i for i, x in enumerate(pa) if x.text == 'Lattn:')
    pa = pa[k:]
    hdr = open('parallel_sum__sliding_local_dilated__mixer_channel_mlp__prompt.s.ref').read().split('; Override launch')[0]
    t = hdr + f"; @launch grid=(256,1,1) block=(256,1,1) lds=163840\n.amdgcn_target \"amdgcn-amd-amdhsa--gfx950\"\n.text\n.globl {KN}\n.p2align 8\n.type {KN},@function\n{KN}:\n"
    t += render(pm) + render(pa) + "Lend:\ns_endpgm\n"
    t += f""".section .rodata,"a"
.p2align 6
.amdhsa_kernel {KN}
  .amdhsa_next_free_vgpr 512
  .amdhsa_next_free_sgpr 102
  .amdhsa_accum_offset 256
  .amdhsa_group_segment_fixed_size 0
  .amdhsa_kernarg_size 88
  .amdhsa_user_sgpr_count 2
  .amdhsa_user_sgpr_kernarg_segment_ptr 1
  .amdhsa_system_sgpr_workgroup_id_x 1
.end_amdhsa_kernel
"""
    open(path, 'w').write(t)
    auto = lambda p: sum(1 for x in p if x.note == 'auto')
    print(f"{path}: mlp {len(pm)} ins ({n1} pad, {auto(pm)} autowait), attn {len(pa)} ins ({n2} pad, {auto(pa)} autowait), {len(t)} bytes")

if __name__ == '__main__':
    c = Cfg()
    out = sys.argv[1] if len(sys.argv) > 1 else 'k.s'
    for a in sys.argv[2:]:
        k, v = a.split('='); setattr(c, k, eval(v))
    gen(out, c)
```

```python
import sys, struct
from asmlib import *

KN = "parallel_sum__sliding_local_dilated__mixer_channel_mlp__prompt_kernel"
def f2u(x): return struct.unpack('<I', struct.pack('<f', x))[0]
GA = -2.0 * 1.4426950408889634 * 0.7978845608028654
GB = GA * 0.044715
SCL = (28 ** -0.5) * 1.4426950408889634
NEG = 0xF149F2CA
OOB = 0x7FFFFFF0
PART = 1 << 20
STAMP = 1 << 16
STAMP2 = 1 << 18

SX, SQKV, SWO, SW1, SB1, SW2, SB2, SOUT, SDBG, SWS = 32, 36, 40, 44, 48, 52, 56, 60, 64, 68
sW, sT, sRole, sJ = 3, 4, 5, 6
sSO = 7
sM0 = 72
sA0 = 73
sR = [74, 75, 76]
sOwn = 77
sPo = [78, 79, 80]
sPown = 81
sGB, sOne, sLo, sHi = 82, 83, 84, 85
sFl = 86
sIn = 87
sXo = 88
sM0h = 89
sRo = [90, 91, 92]
sOwnO = 93
sQ = 94
sSc = 95
sT0, sT1, sT2, sT3 = 96, 97, 98, 99
sCnt = 30
sTm = 8

def mark(c, k, vS):
    if not c.it: return []
    return [Group(I("s_memtime s[0:1]\ns_waitcnt lgkmcnt(0)") + [Ins(f"v_writelane_b32 v{v}, s0, {k}") for v in vS])]

def srd(d, base, n):
    return I(f"s_mov_b32 s{d}, s{base}\ns_mov_b32 s{d+1}, s{base+1}\ns_mov_b32 s{d+2}, {n}\ns_mov_b32 s{d+3}, 0x20000")

class Cfg:
    m = 2; perm = [0, 4, 1, 5, 2, 6, 3, 7]
    RM = 6; RA = 5
    stamps = False
    prog = True
    it = False
    delay = 0
    osc = ''
    psc = 'sc1'
    lsc = 'sc1'

def common(c):
    m = c.m; ns = 8 // m; lm = m.bit_length() - 1; lns = ns.bit_length() - 1
    P = sum(v << (4 * i) for i, v in enumerate(c.perm))
    p = I(f"""
s_cmp_ge_u32 s2, 256
s_cbranch_scc1 Lend
s_load_dwordx8 s[8:15], s[0:1], 0
s_load_dwordx8 s[16:23], s[0:1], 32
s_load_dwordx4 s[24:27], s[0:1], 64
s_load_dwordx2 s[28:29], s[0:1], 80
""")
    if c.stamps: p += I("s_memrealtime s[100:101]")
    if c.delay:
        p += I(f"s_mov_b32 s3, {c.delay}\nLdly:\ns_nop 15\ns_nop 15\ns_nop 15\ns_nop 15\ns_sub_u32 s3, s3, 1\ns_cmp_lg_u32 s3, 0\ns_cbranch_scc1 Ldly")
    p += I(f"""
v_lshrrev_b32 v1, 6, v0
v_cmp_eq_u32 vcc, 0, v0
v_readfirstlane_b32 s{sW}, v1
v_mov_b32 v2, {OOB}
v_cndmask_b32 v7, v2, v0, vcc
v_and_b32 v0, 63, v0
s_and_b32 s{sT0}, s2, 7
s_lshr_b32 s{sT1}, s2, 3
s_and_b32 s{sT2}, s{sT0}, {ns-1}
s_lshr_b32 s{sT0}, s{sT0}, {lns}
s_lshl_b32 s{sT2}, s{sT2}, {lm}
s_and_b32 s{sT3}, s{sT1}, {m-1}
s_add_u32 s{sT2}, s{sT2}, s{sT3}
s_lshl_b32 s{sT2}, s{sT2}, 2
s_lshr_b32 s{sRole}, {hex(P)}, s{sT2}
s_and_b32 s{sRole}, s{sRole}, 7
s_mul_i32 s{sT0}, s{sT0}, {32//m}
s_lshr_b32 s{sT1}, s{sT1}, {lm}
s_add_u32 s{sT}, s{sT0}, s{sT1}
s_min_u32 s{sJ}, s{sRole}, 6
s_lshl_b32 s{sM0}, s{sW}, 12
s_lshl_b32 s{sM0h}, s{sW}, 11
s_lshl_b32 s{sFl}, s{sT}, 7
; x address: (64T+16w+t16)*896 + g*16  -> v6
s_lshl_b32 s{sT0}, s{sT}, 6
s_lshl_b32 s{sT1}, s{sW}, 4
s_add_u32 s{sT0}, s{sT0}, s{sT1}
v_and_b32 v1, 15, v0
v_lshrrev_b32 v2, 4, v0
v_add_u32 v3, s{sT0}, v1
v_mul_u32_u24 v3, 896, v3
v_lshl_add_u32 v6, v2, 4, v3
s_cmp_ge_u32 s{sRole}, 4
s_cbranch_scc1 Lattn
""")
    return p

def build_srds():
    p = srd(SX, 8, 2048 * 896)
    return p
def build_srds2():
    p = []
    p += srd(SW1, 16, 448 * 3584) + srd(SQKV, 10, 448 * 2688) + srd(SWS, 28, 0x10000000) + srd(SB1, 18, 1792 * 2)
    p += srd(SWO, 12, 448 * 896) + srd(SW2, 20, 1792 * 896) + srd(SB2, 22, 896) + srd(SOUT, 24, 2048 * 896) + srd(SDBG, 26, 256)
    return p

def consts():
    return I(f"""
s_mov_b32 s{sGB}, {hex(f2u(GB))}
s_mov_b32 s{sOne}, 0x3f803f80
s_mov_b32 s{sLo}, 0x00003f80
s_mov_b32 s{sHi}, 0x3f800000
s_mov_b32 s{sSc}, {hex(f2u(SCL))}
""")

def round_scalars(hb_rows, attn):
    p = []
    for r in range(3):
        p += I(f"""
s_lshr_b32 s{sT0}, s{sW}, 1
s_add_u32 s{sT0}, s{sT0}, s{sJ}
s_add_u32 s{sT0}, s{sT0}, {1+2*r}
s_sub_u32 s{sT1}, s{sT0}, 7
s_cmp_ge_u32 s{sT0}, 7
s_cselect_b32 s{sT0}, s{sT1}, s{sT0}
s_mul_i32 s{sT1}, s{sT}, 7
s_add_u32 s{sT1}, s{sT1}, s{sT0}
s_lshl_b32 s{sT1}, s{sT1}, 3
s_add_u32 s{sT1}, s{sT1}, s{sRole}
s_lshl_b32 s{sT1}, s{sT1}, 13
s_add_u32 s{sPo[r]}, s{sT1}, {PART}
s_lshl_b32 s{sT0}, s{sT0}, 7
s_and_b32 s{sT1}, s{sW}, 1
s_lshl_b32 s{sT2}, s{sT1}, 5
s_add_u32 s{sT2}, s{sT2}, s{hb_rows}
s_mul_i32 s{sT2}, s{sT2}, 896
s_add_u32 s{sR[r]}, s{sT2}, s{sT0}
""")
        if attn:
            p += I(f"""
s_sub_u32 s{sT2}, s{sRole}, 4
s_mul_i32 s{sT2}, s{sT2}, 112
s_mul_i32 s{sT1}, s{sT1}, 28
s_add_u32 s{sT2}, s{sT2}, s{sT1}
s_mul_i32 s{sT2}, s{sT2}, 896
s_add_u32 s{sRo[r]}, s{sT2}, s{sT0}
""")
    p += I(f"""
s_mul_i32 s{sT1}, s{sT}, 7
s_add_u32 s{sT1}, s{sT1}, s{sJ}
s_lshl_b32 s{sT1}, s{sT1}, 16
s_add_u32 s{sIn}, s{sT1}, {PART}
s_lshl_b32 s{sT1}, s{sRole}, 13
s_add_u32 s{sPown}, s{sIn}, s{sT1}
s_lshl_b32 s{sT0}, s{sJ}, 7
s_lshl_b32 s{sT2}, s{sW}, {4 if attn else 5}
s_add_u32 s{sT2}, s{sT2}, s{hb_rows}
s_mul_i32 s{sT2}, s{sT2}, 896
s_add_u32 s{sOwn}, s{sT2}, s{sT0}
s_cmp_eq_u32 s{sRole}, 7
s_cselect_b32 s{sXo}, {OOB}, 0
""")
    if attn:
        p += I(f"""
s_sub_u32 s{sT2}, s{sRole}, 4
s_lshl_b32 s{sT2}, s{sT2}, 2
s_add_u32 s{sT2}, s{sT2}, s{sW}
s_mul_i32 s{sT2}, s{sT2}, {28*896}
s_add_u32 s{sOwnO}, s{sT2}, s{sT0}
""")
    return p

def dma_pat8(dst, RS, t0, t1, bit3=False):
    p = I(f"""
v_lshrrev_b32 v{t0}, 3, v0
v_mul_u32_u24 v{t0}, {RS}, v{t0}
v_and_b32 v{t1}, 7, v0
v_bfe_u32 v{dst}, v0, 4, 1
v_lshlrev_b32 v{dst}, 2, v{dst}
v_xor_b32 v{t1}, v{t1}, v{dst}
v_lshl_add_u32 v{dst}, v{t1}, 4, v{t0}
""")
    if bit3:
        p += I(f"v_xor_b32 v{t1}, 2, v{t1}\nv_lshl_add_u32 v{t1}, v{t1}, 4, v{t0}")
    for j in range(1, 4):
        src = t1 if (bit3 and j & 1) else dst
        p += I(f"v_add_u32 v{dst+j}, {j*(8*RS-1024)}, v{src}")
    return p

def g2_addrs(vT2, vT3, vF0, vP0, vPI, vXO, OREG, t0, t1, t2):
    return I(f"""
v_bfe_u32 v{t0}, v0, 2, 2
v_lshrrev_b32 v{t1}, 5, v0
v_lshl_add_u32 v{t1}, v{t1}, 2, v{t0}
v_lshlrev_b32 v{t1}, 7, v{t1}
v_and_b32 v{t2}, 3, v0
v_lshlrev_b32 v{t2}, 3, v{t2}
v_bfe_u32 v{t0}, v0, 4, 1
v_lshl_add_u32 v{t2}, v{t0}, 5, v{t2}
v_bfe_u32 v{t0}, v0, 3, 1
s_and_b32 s{sT0}, s{sW}, 1
v_xor_b32 v{t0}, s{sT0}, v{t0}
v_lshl_add_u32 v{t2}, v{t0}, 6, v{t2}
v_add_u32 v{vT3}, v{t1}, v{t2}
v_add_u32 v{vT3+1}, 0x10000, v{vT3}
s_lshr_b32 s{sT1}, s{sW}, 1
s_lshl_b32 s{sT2}, s{sT1}, 13
v_add_u32 v{vT2}, s{sT2}, v{vT3}
v_add_u32 v{vT2+1}, 0x10000, v{vT2}
v_lshlrev_b32 v{t0}, 4, v0
s_lshl_b32 s{sT2}, s{sT1}, 10
s_add_u32 s{sT2}, s{sT2}, {OREG}
v_add_u32 v{vF0}, s{sT2}, v{t0}
v_xor_b32 v{vF0+1}, 1024, v{vF0}
s_lshl_b32 s{sT2}, s{sT0}, 12
s_lshl_b32 s{sT3}, s{sT1}, 11
s_add_u32 s{sT2}, s{sT2}, s{sT3}
v_add_u32 v{vP0}, s{sT2}, v{t0}
v_xor_b32 v{vP0+1}, 2048, v{vP0}
v_mov_b32 v{vPI}, v{vP0}
s_lshl_b32 s{sT2}, s{sT}, 6
s_lshl_b32 s{sT3}, s{sT1}, 5
s_add_u32 s{sT2}, s{sT2}, s{sT3}
v_and_b32 v{t0}, 31, v0
v_add_u32 v{t0}, s{sT2}, v{t0}
v_mul_u32_u24 v{t0}, 896, v{t0}
v_lshrrev_b32 v{t1}, 5, v0
s_lshl_b32 s{sT2}, s{sJ}, 7
s_lshl_b32 s{sT3}, s{sT0}, 6
s_add_u32 s{sT2}, s{sT2}, s{sT3}
v_lshl_add_u32 v{t1}, v{t1}, 4, s{sT2}
v_add_u32 v{vXO}, v{t0}, v{t1}
v_mov_b32 v{vXO+1}, v{t1}
""")

def stats_chunk(raw, un, s1, s2, first):
    p = []
    for d in range(4):
        a = s1 + (d & 1); b = s2 + (d & 1)
        c1 = '0' if (first and d < 2) else f'v{a}'
        c2 = '0' if (first and d < 2) else f'v{b}'
        p += I(f"v_dot2_f32_bf16 v{a}, v{raw+d}, s{sOne}, {c1}\nv_dot2_f32_bf16 v{b}, v{raw+d}, v{raw+d}, {c2}")
        if un is not None:
            p += I(f"v_lshlrev_b32 v{un+2*d}, 16, v{raw+d}\nv_and_b32 v{un+2*d+1}, 0xffff0000, v{raw+d}")
    return p

def stats_final(s1, s2, t, double, red, r2out=None):
    p = I(f"v_add_f32 v{s1}, v{s1}, v{s1+1}\nv_add_f32 v{s2}, v{s2}, v{s2+1}")
    p += red(s1, s2, t)
    eps = hex(f2u(1e-5)); inv = hex(f2u(1.0 / 448))
    p += I(f"""
v_mul_f32 v{s1}, {inv}, v{s1}
v_mul_f32 v{s2}, {inv}, v{s2}
v_fma_f32 v{s2}, -v{s1}, v{s1}, v{s2}
v_max_f32 v{s2}, 0, v{s2}
v_add_f32 v{t}, {eps}, v{s2}
v_rsq_f32 v{t}, v{t}
""")
    if double or r2out is not None:
        p += I(f"""
v_mul_f32 v{s2}, v{s2}, v{t}
v_mul_f32 v{s2}, v{s2}, v{t}
v_add_f32 v{s2}, {eps}, v{s2}
v_rsq_f32 v{s2}, v{s2}
""")
        if double: p += I(f"v_mul_f32 v{t}, v{t}, v{s2}")
        else: p += I(f"v_mov_b32 v{r2out}, v{s2}")
    p += I(f"v_mul_f32 v{s2}, v{s1}, v{t}\nv_mov_b32 v{s1}, v{t}\nv_sub_f32 v{s2}, 0, v{s2}")
    return p

def red_g(s1, s2, t):
    p = []
    for sw in ('v_permlane32_swap_b32', 'v_permlane16_swap_b32'):
        p += I(f"""
v_mov_b32 v{t}, v{s1}
v_mov_b32 v{t+1}, v{s2}
{sw} v{s1}, v{t}
{sw} v{s2}, v{t+1}
v_add_f32 v{s1}, v{s1}, v{t}
v_add_f32 v{s2}, v{s2}, v{t+1}
""")
    return p
def red_row(s1, s2, t):
    p = []
    for k in (8, 4, 2, 1):
        p += I(f"v_add_f32_dpp v{s1}, v{s1}, v{s1} row_ror:{k} row_mask:0xf bank_mask:0xf\nv_add_f32_dpp v{s2}, v{s2}, v{s2} row_ror:{k} row_mask:0xf bank_mask:0xf")
    return p

def norm_chunk(un, pk, sc, sh, addr, off):
    p = []
    for e in range(8): p += I(f"v_fma_f32 v{un+e}, v{un+e}, v{sc}, v{sh}")
    for d in range(4): p += I(f"v_cvt_pk_bf16_f32 v{pk+d}, v{un+2*d}, v{un+2*d+1}")
    p += I(f"ds_write_b128 v{addr}, v[{pk}:{pk+3}] offset:{off}")
    return p

def gelu_group(zs, tmp, vA, pre=None):
    p = []
    n = len(zs)
    if pre: p += pre
    p += [Ins(f"v_mul_f32 v{tmp+i}, v{z}, v{z}") for i, z in enumerate(zs)]
    p += [Ins(f"v_fma_f32 v{tmp+i}, v{tmp+i}, s{sGB}, v{vA}") for i in range(n)]
    p += [Ins(f"v_mul_f32 v{tmp+i}, v{tmp+i}, v{z}") for i, z in enumerate(zs)]
    p += [Ins(f"v_exp_f32 v{tmp+i}, v{tmp+i}") for i in range(n)]
    p += [Ins(f"v_add_f32 v{tmp+i}, 1.0, v{tmp+i}") for i in range(n)]
    p += [Ins(f"v_rcp_f32 v{tmp+i}, v{tmp+i}") for i in range(n)]
    p += [Ins(f"v_mul_f32 v{tmp+i}, v{tmp+i}, v{z}") for i, z in enumerate(zs)]
    return p

class Slot:
    def __init__(self, srd, base, off, vpat, m0, ninstr, trs, mfmas, cap):
        self.srd, self.base, self.off, self.vpat, self.m0, self.ninstr = srd, base, off, vpat, m0, ninstr
        self.trs = trs
        self.mfmas = mfmas
        self.cap = cap

def dma_ops(n, s, R):
    setup = I(f"s_add_u32 s{sSO}, s{s.base}, {s.off}\ns_add_u32 m0, s{s.m0}, {(n % R) * 16384}")
    d = [Ins(f"buffer_load_dwordx4 v{s.vpat+j}, s[{s.srd}:{s.srd+3}], s{sSO} offen offset:{j*1024} lds", tag=('slot', n)) for j in range(s.ninstr)]
    return setup, d

def tr(dst, vlo, base, off, acc=False):
    a = base + off
    v = vlo + (a >> 16); a &= 0xffff
    r = 'a' if acc else 'v'
    return Ins(f"ds_read_b64_tr_b16 {r}[{dst}:{dst+1}], v{v} offset:{a}")

def main_loop(slots, R, fill, pre_m, post_m, first_fill=None, span_lim={}, vS=None):
    p = []
    N = len(slots)
    for n in range(N + 1):
        if n < N:
            p.append(Wait(vm=[('slot', n)], lgkm0=True)); p += I("s_barrier")
        else:
            p.append(Wait(lgkm0=True))
        if vS is not None:
            p += I(f"v_writelane_b32 v{vS}, s20, {n}\ns_memtime s[20:21]")
        trs = slots[n].trs((n % R) * 16384) if n < N else []
        nn = n + R - 1
        setup, dm = dma_ops(nn, slots[nn], R) if nn < N else ([], [])
        ms = list(pre_m.get(n, [])) + (slots[n - 1].mfmas if n >= 1 else []) + list(post_m.get(n, []))
        fl = fill.get(n, [])
        if not ms:
            ff = first_fill or []
            p += trs + ff + setup + dm + fl
            continue
        G = len(ms)
        gaps = [[] for _ in range(G)]
        caps = [28.0 if x.passes == 8 else 12.0 for x in ms]
        k = 0; g = 0
        while k < len(trs):
            per = 2 if ms[g].passes == 8 else 1
            if g == G - 1: per = len(trs) - k
            gaps[g] += trs[k:k + per]; k += per; g = min(g + 1, G - 1)
        if dm:
            g0 = min(g, G - 1) if len(trs) <= 8 else G // 2
            span = max(G - 1 - g0, 1)
            gaps[max(g0 - 1, 0)] += setup
            for i, d in enumerate(dm):
                gaps[min(g0 + (i * span) // len(dm), G - 1)].append(d)
        rem = [max(0.01, caps[i] - sum(x.cost for x in gaps[i]) - (8 if i == G - 1 else 0)) for i in range(G)]
        if n in span_lim:
            lo, hi = span_lim[n]
            parts = [[] for _ in range(lo)] + split_cost(fl, rem[lo:hi]) + [[] for _ in range(G - hi)]
        else:
            parts = split_cost(fl, rem)
        for i in range(G):
            p.append(ms[i]); p += gaps[i] + parts[i]
    return p

def spread(fill, ops, it0, it1):
    parts = split_cost(ops, [1] * (it1 - it0 + 1))
    for i, x in enumerate(parts):
        fill[it0 + i] = interleave(fill.get(it0 + i, []), x)

def mf32(d, a, b, c, areg='v', breg='a'):
    cc = f"v[{c}:{c+15}]" if c is not None else "0"
    return Ins(f"v_mfma_f32_32x32x16_bf16 v[{d}:{d+15}], {areg}[{a}:{a+3}], {breg}[{b}:{b+3}], {cc}")
def mf16(d, a, b, c):
    cc = f"v[{c}:{c+3}]" if c is not None else "0"
    return Ins(f"v_mfma_f32_16x16x32_bf16 v[{d}:{d+3}], {a[0]}[{a[1]}:{a[1]+3}], {b[0]}[{b[1]}:{b[1]+3}], {cc}")

AB = [32, 48]
def pair_slot(n, srd_, base, off, vD2, vT2, acc, fr, first):
    ab = AB[n & 1]
    trs = lambda lb: [tr(ab + ks * 4 + h * 2, vT2, lb, ks * 2048 + h * 1024) for ks in range(4) for h in range(2)]
    ms = [mf32(acc + tt * 16, ab + ks * 4, fr + ks * 8 + tt * 4, None if (first and ks == 0) else acc + tt * 16) for ks in range(4) for tt in range(2)]
    return Slot(srd_, base, off, vD2, sM0, 4, trs, ms, 28)
def own_slot(n, srd_, base, off, vD2, vT3, acc, fr, nks):
    ab = 192 + 32 * (n & 1)
    trs = lambda lb: [tr(ab + ks * 4 + h * 2, vT3, lb, ks * 2048 + h * 1024, acc=True) for ks in range(nks) for h in range(2)]
    ms = [mf32(acc, ab + ks * 4, fr + ks * 8, acc, areg='a') for ks in range(nks)]
    return Slot(srd_, base, off, vD2, sM0 if nks == 8 else sM0h, nks // 2, trs, ms, 28)

def frag_reads(vF0, ks0, nks, areg0):
    return [Ins(f"ds_read_b128 a[{areg0 + k*8 + t*4}:{areg0 + k*8 + t*4 + 3}], v{vF0 + t} offset:{(ks0 + k) * 2048}") for k in range(nks) for t in range(2)]

PSC = ['sc1']
def part_store(acc, pk, vP0, so, ntt=2):
    p = []
    for tt in range(ntt):
        for c in range(2):
            q = pk + ((tt * 2 + c) % 4) * 4
            for d in range(4):
                p += I(f"v_cvt_pk_bf16_f32 v{q+d}, v{acc + tt*16 + c*8 + 2*d}, v{acc + tt*16 + c*8 + 2*d + 1}")
            p.append(Ins(f"buffer_store_dwordx4 v[{q}:{q+3}], v{vP0+tt}, s[{SWS}:{SWS+3}], s{so} offen offset:{c*1024} {PSC[0]}", tag='part'))
    return p

def own_init_loads(t, vXO):
    p = []
    for c in range(2):
        p += I(f"buffer_load_dwordx4 v[{t+c*4}:{t+c*4+3}], v{vXO}, s[{SX}:{SX+3}], s{sXo} offen offset:{c*32}")
    for c in range(2):
        p += I(f"buffer_load_dwordx4 v[{t+8+c*4}:{t+8+c*4+3}], v{vXO+1}, s[{SB2}:{SB2+3}], s{sXo} offen offset:{c*32}")
    return p
def own_init(t, acc):
    p = []
    for k in range(4):
        b = t + 4 * k
        p += I(f"v_permlane32_swap_b32 v{b}, v{b+2}\nv_permlane32_swap_b32 v{b+1}, v{b+3}")
    for d in range(8):
        p += I(f"v_dot2_f32_bf16 v{acc+2*d}, v{t+d}, s{sLo}, 0\nv_dot2_f32_bf16 v{acc+2*d+1}, v{t+d}, s{sHi}, 0")
    for d in range(8):
        p += I(f"v_dot2_f32_bf16 v{acc+2*d}, v{t+8+d}, s{sLo}, v{acc+2*d}\nv_dot2_f32_bf16 v{acc+2*d+1}, v{t+8+d}, s{sHi}, v{acc+2*d+1}")
    return p

def clear_flag(vz, vtid0):
    return I(f"""
v_mov_b32 v{vz}, 0
v_mov_b32 v{vz+1}, 0
v_mov_b32 v{vz+2}, 0
v_mov_b32 v{vz+3}, 0
s_lshl_b32 s{sT0}, s{sRole}, 4
s_add_u32 s{sT0}, s{sT0}, s{sFl}
""") + I(f"buffer_store_dwordx4 v[{vz}:{vz+3}], v{vtid0}, s[{SWS}:{SWS+3}], s{sT0} offen sc1", tag='clr')
def announce(vone, vtid0):
    return I(f"v_mov_b32 v{vone}, 1\ns_lshl_b32 s{sT0}, s{sT}, 3") + [Wait(vm=['clr'])] + \
           I(f"buffer_atomic_add v{vone}, v{vtid0}, s[{SDBG}:{SDBG+3}], s{sT0} offen sc1")

def tail(c, acc, vPI, vXO, vDbg, ld, t, pre, vP0=None, pk=None, vS=None):
    p = []
    if vP0 is not None:
        p += I(f"s_cmp_lg_u32 s{sRole}, 7\ns_cbranch_scc1 {pre}_own\ns_nop 7\ns_nop 3")
        p += part_store(acc, pk, vP0, sPown, ntt=1)
        p += I(f"{pre}_own:")
    if c.stamps: p += I("s_memrealtime s[12:13]")
    p += I(f"""
v_cmp_eq_u32 vcc, 0, v0
v_mov_b32 v{t}, {OOB}
v_mov_b32 v{t+1}, 1
s_lshl_b32 s{sT0}, s{sRole}, 4
s_lshl_b32 s{sT1}, s{sW}, 2
v_cndmask_b32 v{t}, v{t}, v0, vcc
s_add_u32 s{sT0}, s{sT0}, s{sT1}
s_add_u32 s{sT0}, s{sT0}, s{sFl}
s_waitcnt vmcnt(0)
buffer_store_dword v{t+1}, v{t}, s[{SWS}:{SWS+3}], s{sT0} offen sc1
""")
    p += mark(c, 54, [vS])
    if vP0 is not None:
        p += I(f"s_cmp_eq_u32 s{sRole}, 7\ns_cbranch_scc1 {pre}_fin")
    p += I(f"""
v_and_b32 v{t+2}, 31, v0
v_lshlrev_b32 v{t+2}, 2, v{t+2}
s_mov_b32 s{sCnt}, 0x10000
v_mov_b32 v{t+3}, 0
s_lshl_b32 s{sT1}, s{sT}, 3
{pre}_dbg:
v_readfirstlane_b32 s{sT0}, v{vDbg}
s_sub_u32 s{sCnt}, s{sCnt}, 1
s_cselect_b32 s{sT0}, 8, s{sT0}
s_cmp_ge_u32 s{sT0}, 8
s_cbranch_scc1 {pre}_poll0
buffer_load_dword v{vDbg}, v{t+3}, s[{SDBG}:{SDBG+3}], s{sT1} offen sc1
s_waitcnt vmcnt(0)
s_branch {pre}_dbg
{pre}_poll0:
s_mov_b32 s{sCnt}, 0x10000
{pre}_poll:
buffer_load_dword v{t+1}, v{t+2}, s[{SWS}:{SWS+3}], s{sFl} offen sc1
s_sub_u32 s{sCnt}, s{sCnt}, 1
s_cbranch_scc1 {pre}_go
s_waitcnt vmcnt(0)
v_cmp_ne_u32 vcc, 1, v{t+1}
s_nop 4
s_cbranch_vccnz {pre}_poll
{pre}_go:
""")
    if c.stamps: p += I("s_memrealtime s[14:15]")
    p += mark(c, 55, [vS])
    for k in range(7):
        p += I(f"s_add_u32 s{sT0}, s{sRole}, {k+1}\ns_and_b32 s{sT0}, s{sT0}, 7\ns_lshl_b32 s{sT0}, s{sT0}, 13\ns_add_u32 s{sT0}, s{sT0}, s{sIn}")
        for cc in range(2):
            r = ld + k * 8 + cc * 4
            p += I(f"buffer_load_dwordx4 v[{r}:{r+3}], v{vPI}, s[{SWS}:{SWS+3}], s{sT0} offen offset:{cc*1024} {c.lsc}")
    for k in range(7):
        for d in range(8):
            p += I(f"v_dot2_f32_bf16 v{acc+2*d}, v{ld+k*8+d}, s{sLo}, v{acc+2*d}\nv_dot2_f32_bf16 v{acc+2*d+1}, v{ld+k*8+d}, s{sHi}, v{acc+2*d+1}")
    p += mark(c, 56, [vS])
    for d in range(8):
        p += I(f"v_cvt_pk_bf16_f32 v{ld+d}, v{acc+2*d}, v{acc+2*d+1}")
    for cc in range(2):
        b = ld + 4 * cc
        p += I(f"v_permlane32_swap_b32 v{b}, v{b+2}\nv_permlane32_swap_b32 v{b+1}, v{b+3}")
    for cc in range(2):
        p += I(f"buffer_store_dwordx4 v[{ld+4*cc}:{ld+4*cc+3}], v{vXO}, s[{SOUT}:{SOUT+3}], 0 offen offset:{cc*32} {c.osc}")
    p += I(f"{pre}_fin:")
    if c.stamps:
        p += I(f"""
s_waitcnt vmcnt(0)
s_memrealtime s[16:17]
s_memtime s[18:19]
s_waitcnt lgkmcnt(0)
s_sub_u32 s18, s18, s20
v_mov_b32 v{ld}, s100
v_mov_b32 v{ld+1}, s10
v_mov_b32 v{ld+2}, s12
v_mov_b32 v{ld+3}, s14
v_mov_b32 v{ld+4}, s16
v_mov_b32 v{ld+5}, s18
v_mov_b32 v{ld+6}, s{sRole}
v_mov_b32 v{ld+7}, s{sT}
s_lshl_b32 s{sT0}, s2, 7
s_lshl_b32 s{sT1}, s{sW}, 5
s_add_u32 s{sT0}, s{sT0}, s{sT1}
s_add_u32 s{sT0}, s{sT0}, {STAMP}
buffer_store_dwordx4 v[{ld}:{ld+3}], v{t}, s[{SWS}:{SWS+3}], s{sT0} offen
buffer_store_dwordx4 v[{ld+4}:{ld+7}], v{t}, s[{SWS}:{SWS+3}], s{sT0} offen offset:16
""")
    if c.it:
        p += I(f"""
s_lshl_b32 s{sT0}, s2, 10
s_lshl_b32 s{sT1}, s{sW}, 8
s_add_u32 s{sT0}, s{sT0}, s{sT1}
s_add_u32 s{sT0}, s{sT0}, {STAMP2}
v_writelane_b32 v{vS}, s20, 63
s_memtime s[0:1]
s_waitcnt lgkmcnt(0)
v_writelane_b32 v{vS}, s0, 57
v_lshlrev_b32 v{t}, 2, v0
buffer_store_dword v{vS}, v{t}, s[{SWS}:{SWS+3}], s{sT0} offen
""")
    p += I("s_endpgm")
    return p

def stamp_main(c):
    return I("s_memrealtime s[10:11]\ns_memtime s[20:21]") if c.stamps else []

def mlp(c):
    R = c.RM
    XH = R * 16384; BT = XH + 57344
    vD1, vD2, vT1, vT2, vT3 = 8, 12, 16, 18, 20
    vHW, vXF, vF0, vBA, vP0, vPI, vGA = 22, 23, 24, 26, 27, 29, 30
    vXO = 176; vDbg = 178; vXW = 179; vSC, vSH = 180, 182
    accA, accB, accC, bias, GT, PK = 64, 96, 128, 160, 184, 192
    RAW = 32
    UN = [96 + 8 * i for i in range(8)] + [208 + 8 * i for i in range(6)]
    p = I("s_waitcnt lgkmcnt(0)") + mark(c, 48, [31]) + build_srds()
    for i in range(14):
        p += I(f"buffer_load_dwordx4 v[{RAW+4*i}:{RAW+4*i+3}], v6, s[{SX}:{SX+3}], 0 offen offset:{i*64}")
    p += build_srds2() + consts()
    slots = []
    for r in range(3):
        acc = [accA, accB, accA][r]
        for s in range(7):
            n = len(slots); ab = AB[n & 1]
            trs = lambda lb, ab=ab: [tr(ab + ks * 4 + h * 2, vT1, lb, ks * 2048 + h * 512) for ks in range(4) for h in range(2)]
            ms = [mf32(acc + tt * 16, ab + ks * 4, s * 32 + ks * 8 + tt * 4, bias if (s == 0 and ks == 0) else acc + tt * 16) for ks in range(4) for tt in range(2)]
            slots.append(Slot(SW1, sA0, s * 64 * 3584 + r * 256, vD1, sM0, 4, trs, ms, 28))
    order = [(0, k) for k in range(4)] + [(1, k) for k in range(4)] + [(0, 4), (0, 5), (1, 4), (1, 5)] + [(2, k) for k in range(6)]
    for r, kb in order:
        slots.append(pair_slot(len(slots), SW2, sR[r], kb * 64 * 896, vD2, vT2, [accB, accC, accA][r], kb * 32, kb == 0))
    for u in range(3):
        slots.append(own_slot(len(slots), SW2, sOwn, u * 128 * 896, vD2, vT3, accB, u * 64, 8))
    p += dma_pat8(vD1, 3584, 1, 2)
    p += I(f"""
s_mul_i32 s{sT0}, s{sRole}, 6
s_lshr_b32 s{sT1}, s{sW}, 1
s_add_u32 s{sT0}, s{sT0}, s{sT1}
s_lshl_b32 s{sT0}, s{sT0}, 7
s_and_b32 s{sT1}, s{sW}, 1
s_mul_i32 s{sT1}, s{sT1}, {32*3584}
s_add_u32 s{sA0}, s{sT0}, s{sT1}
""")
    p += I(f"""
s_mul_i32 s{sT0}, s{sRole}, 768
s_lshl_b32 s{sT1}, s{sW}, 8
s_add_u32 s{sT0}, s{sT0}, s{sT1}
v_lshlrev_b32 v1, 2, v0
s_cmp_lt_u32 s{sW}, 3
s_cselect_b32 s{sT0}, s{sT0}, {OOB}
buffer_load_dword v5, v1, s[{SB1}:{SB1+3}], s{sT0} offen
""")
    for n in range(R - 1):
        su, d = dma_ops(n, slots[n], R); p += su + d
    p += mark(c, 49, [31])
    p += clear_flag(PK, 7)
    p += dma_pat8(vD2, 896, 1, 2)
    p += I(f"s_mul_i32 s{sCnt}, s{sRole}, 384")
    p += round_scalars(sCnt, False)
    p += g2_addrs(vT2, vT3, vF0, vP0, vPI, vXO, XH, 1, 2, 3)
    p += I(f"""
v_lshrrev_b32 v1, 5, v0
v_lshl_add_u32 v{vT1}, v1, 9, v{vT2}
v_add_u32 v{vT1+1}, 0x10000, v{vT1}
v_lshlrev_b32 v2, 4, v0
v_add_u32 v{vXF}, {XH}, v2
v_add_u32 v{vHW}, s{sM0}, v{vXF}
s_lshl_b32 s{sT0}, s{sW}, 7
s_add_u32 s{sT0}, s{sT0}, {BT}
v_lshl_add_u32 v{vBA}, v1, 4, s{sT0}
v_mov_b32 v{vGA}, {hex(f2u(GA))}
v_and_b32 v1, 15, v0
v_bfe_u32 v2, v0, 4, 1
v_lshl_add_u32 v1, v2, 5, v1
v_lshlrev_b32 v1, 4, v1
v_lshrrev_b32 v2, 5, v0
v_lshl_add_u32 v1, v2, 11, v1
s_lshr_b32 s{sT0}, s{sW}, 1
s_lshl_b32 s{sT0}, s{sT0}, 10
s_and_b32 s{sT1}, s{sW}, 1
s_lshl_b32 s{sT1}, s{sT1}, 8
s_add_u32 s{sT0}, s{sT0}, s{sT1}
s_add_u32 s{sT0}, s{sT0}, {XH}
v_add_u32 v{vXW}, s{sT0}, v1
""")
    p += mark(c, 50, [31])
    for i in range(14):
        p += stats_chunk(RAW + 4 * i, UN[i], vSC, vSH, i == 0)
        if i == 0: p += mark(c, 51, [31])
    p += mark(c, 52, [31])
    p += stats_final(vSC, vSH, 1, True, red_g)
    p += mark(c, 53, [31])
    nrm = [norm_chunk(UN[i], PK + 4 * (i % 4), vSC, vSH, vXW, i * 4096) for i in range(14)]
    fill = {}
    bt = I(f"""
v_lshlrev_b32 v2, 16, v5
v_and_b32 v3, 0xffff0000, v5
s_lshl_b32 s{sT0}, s{sW}, 9
s_add_u32 s{sT0}, s{sT0}, {BT}
v_lshl_add_u32 v1, v0, 3, s{sT0}
ds_write_b64 v1, v[2:3]
""")
    p += bt
    if c.prog:
        p += interleave(nrm[0], nrm[1])
        for s in range(1, 7): fill[s - 1] = interleave(nrm[2 * s], nrm[2 * s + 1])
    else:
        for i in range(0, 14, 2): p += interleave(nrm[i], nrm[i + 1])
    p += stamp_main(c)
    xfr = lambda s: [Ins(f"ds_read_b128 a[{s*32+k*4}:{s*32+k*4+3}], v{vXF} offset:{s*8192+k*1024}") for k in range(8)]
    biasr = lambda r: [Ins(f"ds_read_b128 v[{bias+4*q}:{bias+4*q+3}], v{vBA} offset:{r*512+q*32}") for q in range(4)]
    ff = xfr(0) + biasr(0)
    for s in range(1, 7): fill[s] = interleave(xfr(s), fill.get(s, []))
    spread(fill, biasr(1), 6, 6); spread(fill, biasr(2), 13, 13)
    spread(fill, announce(4, 7), 6, 6)
    def gelu_round(r, acc):
        ops = []
        k = 0
        for tt in range(2):
            for cc in range(2):
                pk = PK + 4 * (k % 4)
                for hh in range(2):
                    zs = [acc + tt * 16 + cc * 8 + hh * 4 + i for i in range(4)]
                    tmp = GT + 4 * (hh)
                    ops += gelu_group(zs, tmp, vGA)
                    ops += I(f"v_cvt_pk_bf16_f32 v{pk+2*hh}, v{tmp}, v{tmp+1}\nv_cvt_pk_bf16_f32 v{pk+2*hh+1}, v{tmp+2}, v{tmp+3}")
                ops += I(f"ds_write_b128 v{vHW}, v[{pk}:{pk+3}] offset:{r*16384 + cc*2048 + tt*1024}")
                k += 1
        return ops
    spread(fill, gelu_round(0, accA), 8, 14)
    spread(fill, gelu_round(1, accB), 15, 21)
    spread(fill, gelu_round(2, accA), 22, 28)
    for b, it in enumerate([17, 19, 22, 23, 29, 30]):
        spread(fill, frag_reads(vF0, 4 * b, 4, 32 * b), it, it + (1 if b < 2 else 0))
    spread(fill, part_store(accB, PK, vP0, sPo[0]), 32, 33)
    spread(fill, part_store(accC, PK, vP0, sPo[1]), 34, 35)
    XI = 208
    spread(fill, own_init_loads(XI, vXO) + I(f"v_mov_b32 v4, 0\ns_lshl_b32 s{sT0}, s{sT}, 3\nbuffer_load_dword v{vDbg}, v4, s[{SDBG}:{SDBG+3}], s{sT0} offen sc1"), 31, 31)
    spread(fill, own_init(XI, accB), 37, 39)
    fill[40] = part_store(accA, PK, vP0, sPo[2])
    p += main_loop(slots, R, fill, {}, {}, ff, vS=31 if c.it else None)
    p += I("s_nop 7\ns_nop 3")
    p += tail(c, accB, vPI, vXO, vDbg, 32, 1, "Lm", vS=31)
    return p

def attn(c):
    R = c.RA
    XS = R * 16384; RT = XS + 71680
    vDH, vD2, vDQ = 8, 12, 16
    vTH, vTQ0, vTQ1, vT2, vT3 = 20, 22, 24, 26, 28
    vXF, vOW = 30, 31
    vF0, vP0, vPI, vXO = 64, 66, 68, 252
    vGA, vPM, vM, vCs, vCp, vC0, vR2, vBi = 70, 71, 72, 76, 80, 84, 88, 92
    vDbg = 69; vXF2 = 254
    HF = 96
    X, Y, accH, Qp, Kp = 120, 160, 200, 216, 232
    RAWm = [32 + 4 * i for i in range(8)] + [96 + 4 * i for i in range(6)]
    UN = [120 + 8 * i for i in range(10)] + [216 + 8 * i for i in range(4)]
    RAWh = 72
    vSC, vSH, vSC2, vSH2 = 88, 90, 92, 94
    sA0h = 31
    xf = lambda ks, tau: (('a', (ks * 4 + tau - 1) * 4) if tau >= 1 else (('a', 224 + ks * 4) if ks < 8 else ('v', HF + (ks - 8) * 4)))
    p = I("Lattn:\ns_waitcnt lgkmcnt(0)") + mark(c, 48, [255]) + build_srds()
    for i in range(14):
        p += I(f"buffer_load_dwordx4 v[{RAWm[i]}:{RAWm[i]+3}], v6, s[{SX}:{SX+3}], 0 offen offset:{i*64}")
    p += I(f"""
s_lshl_b32 s{sT0}, s{sT}, 6
s_lshl_b32 s{sT1}, s{sW}, 2
s_add_u32 s{sT0}, s{sT0}, s{sT1}
s_sub_u32 s{sT0}, s{sT0}, 16
v_lshrrev_b32 v1, 4, v0
v_add_u32 v1, s{sT0}, v1
v_mul_u32_u24 v1, 896, v1
v_and_b32 v2, 15, v0
v_lshl_add_u32 v1, v2, 4, v1
v_cmp_gt_u32 vcc, 8, v2
v_mov_b32 v3, {OOB}
s_cmp_eq_u32 s{sT}, 0
s_cselect_b32 s{sT1}, {OOB}, 0
v_and_b32 v1, 0x3fffffff, v1
v_cndmask_b32 v3, v3, v1, vcc
""")
    for j in range(4):
        p += I(f"buffer_load_dwordx4 v[{RAWh+4*j}:{RAWh+4*j+3}], v{3 if j == 3 else 1}, s[{SX}:{SX+3}], s{sT1} offen offset:{j*256}")
    p += build_srds2() + consts()
    slots = []
    for u in range(4):
        n = len(slots); ab = AB[n & 1]; nks = 4 if u < 3 else 2
        trs = lambda lb, ab=ab, nks=nks: [tr(ab + ks * 4 + h * 2, vTH, lb, ks * 4096 + h * 512) for ks in range(nks) for h in range(2)]
        ms = [mf16(accH + tt * 4, ('v', ab + ks * 4), xf(4 * u + ks, tt + 1), None if (u == 0 and ks == 0) else accH + tt * 4) for ks in range(nks) for tt in range(4)]
        slots.append(Slot(SW1, sA0 if u < 3 else sA0h, u * 128 * 3584, vDH, sM0 if u < 3 else sM0h, nks, trs, ms, 12))
    for sec, acc in ((0, X), (1, Y), (2, X)):
        for s in range(7):
            n = len(slots); ab = AB[n & 1]
            trs = lambda lb, ab=ab: [tr(ab + ks * 8 + hf * 4 + h * 2, vTQ1 if hf else vTQ0, lb, ks * 8192 + h * 1024) for ks in range(2) for hf in range(2) for h in range(2)]
            ms = []
            taus = range(1, 5) if sec == 0 else range(5)
            for ks in range(2):
                for hf in range(2):
                    for tau in taus:
                        d = acc + (hf * 4 + tau - 1) * 4 if sec == 0 else acc + (hf * 5 + tau) * 4
                        a_ = ('v', ab + ks * 8 + hf * 4); b_ = xf(2 * s + ks, tau)
                        if sec == 2: a_, b_ = b_, a_
                        ms.append(mf16(d, a_, b_, None if (s == 0 and ks == 0) else d))
            slots.append(Slot(SQKV, sQ, s * 64 * 2688 + sec * 896, vDQ, sM0, 4, trs, ms, 12))
    racc = [Y, 80, X]
    for r in range(3): slots.append(pair_slot(len(slots), SW2, sR[r], 0, vD2, vT2, racc[r], 0, True))
    for r in range(3):
        for k in range(2): slots.append(pair_slot(len(slots), SWO, sRo[r], k * 56 * 896, vD2, vT2, racc[r], 32 + 32 * k, False))
    slots.append(own_slot(len(slots), SW2, sOwn, 0, vD2, vT3, accH, 0, 4))
    slots.append(own_slot(len(slots), SWO, sOwnO, 0, vD2, vT3, accH, 32, 8))
    assert len(slots) == 36
    p += dma_pat8(vDH, 3584, 1, 2, bit3=True)
    p += I(f"""
s_add_u32 s{sT0}, s{sRole}, 20
s_lshl_b32 s{sT0}, s{sT0}, 7
s_mul_i32 s{sT1}, s{sW}, {32*3584}
s_add_u32 s{sA0}, s{sT0}, s{sT1}
s_mul_i32 s{sT1}, s{sW}, {16*3584}
s_add_u32 s{sA0h}, s{sT0}, s{sT1}
""")
    assert R - 1 <= 4
    p += I(f"""
s_lshl_b32 s{sT1}, s{sW}, 5
s_add_u32 s{sT0}, s{sT0}, s{sT1}
v_lshrrev_b32 v1, 4, v0
v_lshlrev_b32 v1, 3, v1
buffer_load_dwordx2 v[4:5], v1, s[{SB1}:{SB1+3}], s{sT0} offen
""")
    for n in range(R - 1):
        su, d = dma_ops(n, slots[n], R); p += su + d
    p += mark(c, 49, [255])
    p += clear_flag(248, 7)
    p += dma_pat8(vD2, 896, 1, 2)
    p += I(f"s_add_u32 s{sCnt}, s{sRole}, 20\ns_lshl_b32 s{sCnt}, s{sCnt}, 6")
    p += round_scalars(sCnt, True)
    p += g2_addrs(vT2, vT3, vF0, vP0, vPI, vXO, XS, 1, 2, 3)
    p += I(f"""
v_lshrrev_b32 v1, 4, v0
v_and_b32 v2, 15, v0
v_lshlrev_b32 v3, 1, v1
v_xor_b32 v2, v2, v3
v_mul_u32_u24 v1, 2688, v1
v_lshl_add_u32 v{vDQ}, v2, 4, v1
v_add_u32 v{vDQ+1}, {4*2688-1024}, v{vDQ}
v_xor_b32 v2, 8, v2
v_lshl_add_u32 v3, v2, 4, v1
v_add_u32 v{vDQ+2}, {2*(4*2688-1024)}, v3
v_add_u32 v{vDQ+3}, {3*(4*2688-1024)}, v3
s_sub_u32 s{sT0}, s{sRole}, 4
s_mul_i32 s{sT0}, s{sT0}, 224
s_cmp_eq_u32 s{sRole}, 7
s_cselect_b32 s{sT1}, 32, 0
s_sub_u32 s{sT0}, s{sT0}, s{sT1}
s_mul_i32 s{sT2}, s{sW}, {16*2688}
s_add_u32 s{sQ}, s{sT0}, s{sT2}
s_mul_i32 s{sT2}, s{sW}, 56
s_add_u32 s{sT1}, s{sT1}, s{sT2}
v_bfe_u32 v1, v0, 2, 2
v_lshrrev_b32 v2, 4, v0
v_lshl_add_u32 v3, v2, 3, v1
v_and_b32 v2, 1, v2
v_lshl_add_u32 v1, v2, 2, v1
v_lshlrev_b32 v1, 5, v1
v_and_b32 v2, 3, v0
v_lshl_add_u32 v2, v2, 3, s{sT1}
v_xor_b32 v{vTQ0}, v2, v1
v_add_u32 v2, 32, v2
v_xor_b32 v{vTQ1}, v2, v1
v_lshl_add_u32 v{vTQ0}, v3, 8, v{vTQ0}
v_lshl_add_u32 v{vTQ1}, v3, 8, v{vTQ1}
v_add_u32 v{vTQ0+1}, 0x10000, v{vTQ0}
v_add_u32 v{vTQ1+1}, 0x10000, v{vTQ1}
v_bfe_u32 v1, v0, 3, 1
v_bfe_u32 v2, v0, 4, 1
v_lshl_add_u32 v1, v1, 1, v2
v_xor_b32 v1, s{sW}, v1
v_lshlrev_b32 v1, 5, v1
v_and_b32 v2, 3, v0
v_lshl_add_u32 v1, v2, 3, v1
v_lshl_add_u32 v{vTH}, v3, 7, v1
v_add_u32 v{vTH+1}, 0x10000, v{vTH}
v_lshlrev_b32 v2, 4, v0
v_add_u32 v{vXF}, {XS}, v2
v_add_u32 v{vXF2}, {XS + 7*5120}, v2
v_and_b32 v1, 15, v0
v_bfe_u32 v2, v0, 4, 1
v_lshl_add_u32 v1, v2, 5, v1
v_lshlrev_b32 v1, 4, v1
v_lshrrev_b32 v2, 5, v0
v_lshl_add_u32 v1, v2, 3, v1
v_add_u32 v{vOW}, {XS}, v1
v_mov_b32 v{vGA}, {hex(f2u(GA))}
""")
    p += mark(c, 50, [255])
    for i in range(14):
        p += stats_chunk(RAWm[i], UN[i], vSC, vSH, i == 0)
        if i == 0: p += mark(c, 51, [255])
    for j in range(4): p += stats_chunk(RAWh + 4 * j, None, vSC2, vSH2, j == 0)
    p += mark(c, 52, [255])
    p += interleave(stats_final(vSC, vSH, 1, False, red_g, r2out=6), stats_final(vSC2, vSH2, 248, False, red_row))
    p += mark(c, 53, [255])
    vXW, vXWb, vXH = 249, 250, 251
    p += I(f"""
s_add_u32 s{sT0}, s{sW}, 1
s_lshl_b32 s{sT0}, s{sT0}, 10
v_add_u32 v{vXW}, s{sT0}, v{vXF}
v_add_u32 v{vXWb}, s{sT0}, v{vXF2}
v_and_b32 v1, 15, v0
s_lshl_b32 s{sT0}, s{sW}, 2
s_add_u32 s{sT0}, s{sT0}, {RT}
v_lshl_add_u32 v1, v1, 4, s{sT0}
ds_write_b32 v1, v6
v_bfe_u32 v1, v0, 2, 2
v_mul_u32_u24 v1, 5120, v1
v_and_b32 v2, 3, v0
v_lshrrev_b32 v3, 4, v0
v_lshl_add_u32 v2, v2, 4, v3
s_lshl_b32 s{sT0}, s{sW}, 6
s_add_u32 s{sT0}, s{sT0}, {XS}
v_lshl_add_u32 v2, v2, 4, s{sT0}
v_add_u32 v{vXH}, v1, v2
""")
    PKA = [32, 36, 40, 44]
    def nrm(i, pk): return norm_chunk(UN[i], pk, vSC, vSH, vXW if i < 7 else vXWb, (i % 7) * 5120)
    def nrm_h(j, un, pk):
        q = []
        for d in range(4): q += I(f"v_lshlrev_b32 v{un+2*d}, 16, v{RAWh+4*j+d}\nv_and_b32 v{un+2*d+1}, 0xffff0000, v{RAWh+4*j+d}")
        q += norm_chunk(un, pk, vSC2, vSH2, vXH, j * 4 * 5120)
        return q
    fill = {}
    for i in range(0, 14, 2): p += interleave(nrm(i, PKA[i % 4]), nrm(i + 1, PKA[(i + 1) % 4]))
    for j in range(3): p += nrm_h(j, 120 + 8 * j, PKA[j])
    q = nrm_h(3, 144, PKA[3]); wr = q.pop()
    p += q + I("v_and_b32 v1, 15, v0\nv_cmp_gt_u32 vcc, 8, v1\ns_nop 4\ns_and_saveexec_b64 s[22:23], vcc") + [wr] + I("s_mov_b64 exec, s[22:23]")
    p += I(f"""
v_lshlrev_b32 v{vBi}, 16, v4
v_and_b32 v{vBi+1}, 0xffff0000, v4
v_lshlrev_b32 v{vBi+2}, 16, v5
v_and_b32 v{vBi+3}, 0xffff0000, v5
""")
    p += stamp_main(c)
    def xfr(ks, tau):
        r = xf(ks, tau)
        return Ins(f"ds_read_b128 {r[0]}[{r[1]}:{r[1]+3}], v{vXF if ks < 7 else vXF2} offset:{(ks % 7) * 5120 + tau * 1024}")
    ff = [xfr(ks, t) for ks in range(4) for t in range(1, 5)]
    for u in range(1, 4): fill[u] = [xfr(ks, t) for ks in range(4 * u, min(4 * u + 4, 14)) for t in range(1, 5)]
    spread(fill, I(f"v_and_b32 v1, 15, v0\nv_lshlrev_b32 v1, 4, v1\nv_add_u32 v1, {RT}, v1\nds_read_b128 v[{vR2}:{vR2+3}], v1"), 3, 3)
    spread(fill, [xfr(ks, 0) for ks in range(14)], 4, 6)
    spread(fill, announce(4, 7), 5, 5)
    mk = I(f"""
v_and_b32 v1, 15, v0
v_lshrrev_b32 v2, 4, v0
v_cmp_eq_u32 vcc, 3, v2
v_lshlrev_b32 v2, 2, v2
v_and_b32 v3, 1, v0
v_cndmask_b32_e64 v{vPM}, -1, 0, vcc
v_cmp_eq_u32 vcc, 1, v3
v_add_u32 v2, v2, v3
v_mov_b32 v5, 0xffff
v_mov_b32 v6, 0xffff0000
v_cndmask_b32 v5, v5, v6, vcc
v_cmp_le_u32 vcc, v2, v1
v_add_u32 v2, 2, v2
v_mov_b32 v6, {hex(NEG)}
v_cndmask_b32 v{vM+2}, 0, v5, vcc
v_cmp_le_u32 vcc, v2, v1
v_xor_b32 v{vM}, v5, v{vM+2}
v_cndmask_b32 v{vM+3}, 0, v5, vcc
v_xor_b32 v{vM+1}, v5, v{vM+3}
""")
    mk += G(f"s_cmp_eq_u32 s{sT}, 0\ns_cselect_b32 s{sT1}, 0, -1")
    for base, mo in ((vCp, 0), (vCs, 2)):
        for r in range(4):
            mk += I(f"v_and_b32 v1, {'0xffff' if r % 2 == 0 else '0xffff0000'}, v{vM + mo + r // 2}\nv_cmp_ne_u32 vcc, 0, v1\nv_cndmask_b32_e64 v{base + r}, v6, 0, vcc")
    mk += I(f"v_mov_b32 v1, s{sT1}\nv_cmp_ne_u32 vcc, 0, v1")
    for r in range(4): mk += I(f"v_cndmask_b32 v{vC0+r}, v6, v{vCp+r}, vcc")
    spread(fill, mk, 7, 8)
    g = []
    for tt in range(4):
        zs = [accH + tt * 4 + i for i in range(4)]
        tmp = Kp + 4 * (tt & 1); pk = Kp + 8 + 2 * (tt & 1)
        pre = [Ins(f"v_fma_f32 v{z}, v{z}, v{vR2+tt}, v{vBi+i}") for i, z in enumerate(zs)]
        g += gelu_group(zs, tmp, vGA, pre)
        g += I(f"v_cvt_pk_bf16_f32 v{pk}, v{tmp}, v{tmp+1}\nv_cvt_pk_bf16_f32 v{pk+1}, v{tmp+2}, v{tmp+3}")
        g += I(f"ds_write_b64 v{vOW+0}, v[{pk}:{pk+1}] offset:{(tt >> 1) * 1024 + (tt & 1) * 256}".replace(f"v{vOW+0},", "v3,"))
    g = I(f"s_add_u32 s{sT2}, s{sM0h}, {8*2048}\nv_add_u32 v3, s{sT2}, v{vOW}") + g
    spread(fill, g, 9, 17)
    def pack(src, dst, ntile, stride):
        q = []
        for t in range(ntile):
            for hf in range(2):
                a = src + (hf * stride + t) * 4; d = dst + t * 4 + hf * 2
                q += I(f"v_cvt_pk_bf16_f32 v{d}, v{a}, v{a+1}\nv_cvt_pk_bf16_f32 v{d+1}, v{a+2}, v{a+3}")
            q += I(f"v_and_b32 v{dst+t*4+2}, v{vPM}, v{dst+t*4+2}\nv_and_b32 v{dst+t*4+3}, v{vPM}, v{dst+t*4+3}")
        return q
    spread(fill, pack(X, Qp, 4, 4), 12, 13)
    spread(fill, pack(Y, Kp, 5, 5), 19, 19)
    pre_m = {}; post_m = {}
    S = Y
    pre_m[20] = []
    for tt in range(4):
        pre_m[20].append(mf16(S + tt * 8, ('v', Kp + tt * 4), ('v', Qp + tt * 4), vC0 if tt == 0 else vCp))
        pre_m[20].append(mf16(S + tt * 8 + 4, ('v', Kp + tt * 4 + 4), ('v', Qp + tt * 4), vCs))
    P = accH; TT = Qp
    def rep(fmt): return [Ins(fmt.format(s=S + 8 * t, s1=S + 8 * t + 1, s2=S + 8 * t + 2, s3=S + 8 * t + 3, s4=S + 8 * t + 4, s5=S + 8 * t + 5, s6=S + 8 * t + 6, s7=S + 8 * t + 7,
                                         a=TT + 4 * t, b=TT + 4 * t + 1, m=TT + 4 * t + 2, u=TT + 4 * t + 3, p=P + 4 * t, p1=P + 4 * t + 1, p2=P + 4 * t + 2, p3=P + 4 * t + 3)) for t in range(4)]
    sm = []
    sm += rep("v_max3_f32 v{a}, v{s}, v{s1}, v{s4}") + rep("v_max3_f32 v{b}, v{s2}, v{s3}, v{s6}")
    sm += rep("v_max_f32 v{a}, v{a}, v{s5}") + rep("v_max_f32 v{b}, v{b}, v{s7}")
    sm += rep("v_max_f32 v{m}, v{a}, v{b}")
    for sw in ('v_permlane32_swap_b32', 'v_permlane16_swap_b32'):
        sm += rep("v_mov_b32 v{u}, v{m}") + rep(sw + " v{m}, v{u}") + rep("v_max_f32 v{m}, v{m}, v{u}")
    sm += rep("v_sub_f32 v{a}, v{a}, v{m}") + rep("v_sub_f32 v{b}, v{b}, v{m}")
    sm += rep(f"v_mul_f32 v{{a}}, s{sSc}, v{{a}}") + rep(f"v_mul_f32 v{{b}}, s{sSc}, v{{b}}")
    sm += rep("v_exp_f32 v{a}, v{a}") + rep("v_exp_f32 v{b}, v{b}")
    sm += rep("v_add_f32 v{m}, v{a}, v{b}")
    for sw in ('v_permlane32_swap_b32', 'v_permlane16_swap_b32'):
        sm += rep("v_mov_b32 v{u}, v{m}") + rep(sw + " v{m}, v{u}") + rep("v_add_f32 v{m}, v{m}, v{u}")
    sm += rep("v_rcp_f32 v{m}, v{m}")
    sm += rep("v_mul_f32 v{a}, v{a}, v{m}") + rep("v_mul_f32 v{b}, v{b}, v{m}")
    sm += rep("v_cvt_pk_bf16_f32 v{a}, v{a}, v{a}") + rep("v_cvt_pk_bf16_f32 v{b}, v{b}, v{b}")
    sm += rep(f"v_and_b32 v{{p}}, v{vM}, v{{a}}") + rep(f"v_and_b32 v{{p1}}, v{vM+1}, v{{b}}")
    sm += rep(f"v_and_b32 v{{p2}}, v{vM+2}, v{{a}}") + rep(f"v_and_b32 v{{p3}}, v{vM+3}, v{{b}}")
    spread(fill, sm, 21, 25)
    spread(fill, frag_reads(vF0, 8, 4, 0), 22, 23)
    Vp = Kp
    vp = []
    for hf in range(2):
        for tau in range(5):
            a = X + (hf * 5 + tau) * 4; d = Vp + hf * 10 + tau * 2
            vp += I(f"v_cvt_pk_bf16_f32 v{d}, v{a}, v{a+1}\nv_cvt_pk_bf16_f32 v{d+1}, v{a+2}, v{a+3}")
    fill[26] = vp
    post_m[26] = [mf16(X + (hf * 4 + tt) * 4, ('v', Vp + hf * 10 + 2 * tt), ('v', P + 4 * tt), None) for hf in range(2) for tt in range(4)]
    op = I(f"v_add_u32 v3, s{sM0}, v{vOW}")
    for hf in range(2):
        for tt in range(4):
            a = X + (hf * 4 + tt) * 4; d = Qp + (hf * 4 + tt) * 2
            op += I(f"v_cvt_pk_bf16_f32 v{d}, v{a}, v{a+1}\nv_cvt_pk_bf16_f32 v{d+1}, v{a+2}, v{a+3}")
            if hf: op += I(f"v_and_b32 v{d}, v{vPM}, v{d}\nv_and_b32 v{d+1}, v{vPM}, v{d+1}")
            op += I(f"ds_write_b64 v3, v[{d}:{d+1}] offset:{hf * 2048 + (tt >> 1) * 1024 + (tt & 1) * 256}")
    fill[27] = op
    fill[28] = frag_reads(vF0, 0, 8, 32)
    XI = Qp
    spread(fill, own_init_loads(XI, vXO) + I(f"v_mov_b32 v4, 0\ns_lshl_b32 s{sT0}, s{sT}, 3\nbuffer_load_dword v{vDbg}, v4, s[{SDBG}:{SDBG+3}], s{sT0} offen sc1"), 29, 29)
    spread(fill, part_store(racc[0], Kp, vP0, sPo[0]), 31, 32)
    spread(fill, own_init(XI, accH), 32, 34)
    spread(fill, part_store(racc[1], Kp, vP0, sPo[1]), 33, 34)
    fill[35] = part_store(racc[2], Kp, vP0, sPo[2])
    p += main_loop(slots, R, fill, pre_m, post_m, ff, span_lim={26: (0, 8)}, vS=255 if c.it else None)
    p += I("s_nop 7\ns_nop 3")
    p += tail(c, accH, vPI, vXO, vDbg, 80, 1, "La", vP0=vP0, pk=Kp, vS=255)
    return p

def finish(p):
    p = resolve_waits(flatten(p))
    p, n = pad_hazards(p)
    return p, n

def gen(path, c):
    PSC[0] = c.psc
    cm = common(c)
    pm, n1 = finish(cm + mlp(c))
    pa, n2 = finish(cm + attn(c))
    k = next(i for i, x in enumerate(pa) if x.text == 'Lattn:')
    pa = pa[k:]
    hdr = open('parallel_sum__sliding_local_dilated__mixer_channel_mlp__prompt.s.ref').read().split('; Override launch')[0]
    t = hdr + f"; @launch grid=(256,1,1) block=(256,1,1) lds=163840\n.amdgcn_target \"amdgcn-amd-amdhsa--gfx950\"\n.text\n.globl {KN}\n.p2align 8\n.type {KN},@function\n{KN}:\n"
    t += render(pm) + render(pa) + "Lend:\ns_endpgm\n"
    t += f""".section .rodata,"a"
.p2align 6
.amdhsa_kernel {KN}
  .amdhsa_next_free_vgpr 512
  .amdhsa_next_free_sgpr 102
  .amdhsa_accum_offset 256
  .amdhsa_group_segment_fixed_size 0
  .amdhsa_kernarg_size 88
  .amdhsa_user_sgpr_count 2
  .amdhsa_user_sgpr_kernarg_segment_ptr 1
  .amdhsa_system_sgpr_workgroup_id_x 1
.end_amdhsa_kernel
"""
    open(path, 'w').write(t)
    auto = lambda p: sum(1 for x in p if x.note == 'auto')
    print(f"{path}: mlp {len(pm)} ins ({n1} pad, {auto(pm)} autowait), attn {len(pa)} ins ({n2} pad, {auto(pa)} autowait), {len(t)} bytes")

if __name__ == '__main__':
    c = Cfg()
    out = sys.argv[1] if len(sys.argv) > 1 else 'k.s'
    for a in sys.argv[2:]:
        k, v = a.split('='); setattr(c, k, eval(v))
    gen(out, c)
```
